```python
import torch

def _softmax(x, axis=-1):
    return torch.softmax(x, dim=axis)
def _gelu(x):
    return torch.nn.functional.gelu(x, approximate="tanh")
def _silu(x):
    return torch.nn.functional.silu(x)
def _sigmoid(x):
    return torch.sigmoid(x)
def _layernorm(x, axis=-1, eps=1e-5):
    m = x.mean(dim=axis, keepdim=True)
    v = x.var(dim=axis, keepdim=True, unbiased=False)
    return (x - m) / torch.sqrt(v + eps)
def _scatter_add(tgt, idx, src, axis=0):
    return tgt.clone().index_add_(axis, idx, src)
def _segment_sum(src, seg, n):
    out = torch.zeros((n,) + src.shape[1:], dtype=src.dtype)
    return out.index_add_(0, seg, src)
def _pad(x, pw):
    flat = tuple(v for pair in reversed(pw) for v in pair)
    return torch.nn.functional.pad(x, flat)

kernel_name = 'parallel_sum__sliding_block__moe_arch_mod__prompt'

def setup_inputs():

    _w = (lambda a: (lambda t: t.to(torch.bfloat16) if t.is_floating_point() else t)(torch.as_tensor(a)))
    def _A_setup():
        B, S, D = 1, 2048, 448
        return {
            "x": _w((lambda *s: torch.randn(*s, dtype=torch.bfloat16) * 0.05)(B, S, D)),
            "wqkv": _w((lambda *s: torch.randn(*s, dtype=torch.bfloat16) * 0.05)(D, 3 * D)),
            "wo": _w((lambda *s: torch.randn(*s, dtype=torch.bfloat16) * 0.05)(D, D)),
        }
    _A_in = _A_setup()

    def _B_setup():
        B, S, D, F, C = 1, 2048, 448, 1792, 2
        return {
            "x": _w((lambda *s: torch.randn(*s, dtype=torch.bfloat16) * 0.05)(B, S, D)),
            "w_r": _w((lambda *s: torch.randn(*s, dtype=torch.bfloat16) * 0.05)(D)),
            "w_gate": _w((lambda *s: torch.randn(*s, dtype=torch.bfloat16) * 0.05)(D, F)),
            "w_up": _w((lambda *s: torch.randn(*s, dtype=torch.bfloat16) * 0.05)(D, F)),
            "w_down": _w((lambda *s: torch.randn(*s, dtype=torch.bfloat16) * 0.05)(F, D)),
        }
    _B_in = _B_setup()

    return {
        "A_x": _A_in["x"],
        "A_wqkv": _A_in["wqkv"],
        "A_wo": _A_in["wo"],
        "B_x": _B_in["x"],
        "B_w_r": _B_in["w_r"],
        "B_w_gate": _B_in["w_gate"],
        "B_w_up": _B_in["w_up"],
        "B_w_down": _B_in["w_down"],
    }

def reference(A_x, A_wqkv, A_wo, B_x, B_w_r, B_w_gate, B_w_up, B_w_down):
    def _A_ref(x, wqkv, wo):
        B, S, D = x.shape
        H = 16; Dh = D // H; W = 256
        qkv = (lambda x, *d: x.permute(*d))((x @ wqkv).reshape(B, S, 3, H, Dh), 2, 0, 3, 1, 4)
        q, k, v = qkv[0], qkv[1], qkv[2]
        scores = torch.einsum("bhqd,bhkd->bhqk", q, k) * (Dh ** -0.5)
        idx = torch.arange(S)
        mask = (idx[:, None] - idx[None, :] >= 0) & (idx[:, None] - idx[None, :] < W)
        scores = torch.where(mask[None, None], scores, -1e9)
        p = _softmax(scores, axis=-1)
        o = torch.einsum("bhqk,bhkd->bhqd", p, v)
        return (lambda x, *d: x.permute(*d))(o, 0, 2, 1, 3).reshape(B, S, D) @ wo

    def _B_ref(x, w_r, w_gate, w_up, w_down):
        B, S, D = x.shape
        C = 2
        r = x @ w_r
        idx = torch.argsort(-r, axis=-1)[:, :C]
        idx_e = (lambda x, n, axis: torch.repeat_interleave(x, n, dim=axis))(idx.reshape(B, C, 1), D, axis=2)
        x_sel = (lambda x, i, axis: torch.take_along_dim(x, i, dim=axis))(x, idx_e, axis=1)
        g = _silu(x_sel @ w_gate)
        u = x_sel @ w_up
        y = (g * u) @ w_down
        r_sel = _sigmoid((lambda x, i, axis: torch.take_along_dim(x, i, dim=axis))(r, idx, axis=1))
        y = y * r_sel.reshape(B, C, 1)
        b_off = (torch.arange(B) * S).reshape(B, 1)
        flat_idx = (idx + b_off).reshape(B * C)
        zero = (x * 0.0).reshape(B * S, D)
        upd = _scatter_add(zero, flat_idx, y.reshape(B * C, D), axis=0)
        return x + upd.reshape(B, S, D)

    x = A_x
    xn = _layernorm(x, axis=-1)
    return x + _A_ref(xn, A_wqkv, A_wo) + _B_ref(xn, B_w_r, B_w_gate, B_w_up, B_w_down)
```

```python
import re

_RANGE = re.compile(r"^([vsa])\[(\d+):(\d+)\]$")
_SINGLE = re.compile(r"^([vsa])(\d+)$")


def regs_of(tok):
    tok = tok.strip()
    neg = tok.startswith("-")
    if neg:
        tok = tok[1:]
    if tok.startswith("abs(") and tok.endswith(")"):
        tok = tok[4:-1]
    if tok.startswith("|") and tok.endswith("|"):
        tok = tok[1:-1]
    m = _RANGE.match(tok)
    if m:
        return {(m.group(1), i) for i in range(int(m.group(2)), int(m.group(3)) + 1)}
    m = _SINGLE.match(tok)
    if m:
        return {(m.group(1), int(m.group(2)))}
    if tok == "vcc":
        return {("vcc", 0)}
    if tok == "exec":
        return {("exec", 0)}
    if tok == "m0":
        return {("m0", 0)}
    if tok == "scc":
        return {("scc", 0)}
    return set()


TRANS = ("v_exp_f32", "v_log_f32", "v_rcp_f32", "v_rsq_f32", "v_sqrt_f32", "v_sin_f32", "v_cos_f32",
         "v_rcp_iflag_f32")


class Ins:
    __slots__ = ("op", "args", "mods", "text", "rd", "wr", "kind", "passes", "comment", "srcC", "data_rd")

    def __init__(self, op, args, mods, comment=""):
        self.op = op
        self.args = args
        self.mods = mods
        self.comment = comment
        self.rd = set()
        self.wr = set()
        self.kind = None
        self.passes = 0
        self.srcC = set()
        self.data_rd = set()
        self.classify()

    def classify(self):
        op, a = self.op, self.args
        R = [regs_of(x) for x in a]
        if op.startswith("v_mfma"):
            self.kind = "mfma"
            self.wr = R[0]
            self.rd = R[1] | R[2] | R[3]
            self.srcC = R[3]
            if "32x32x16" in op or "32x32x8" in op:
                self.passes = 8
            elif "16x16x32" in op or "16x16x16" in op:
                self.passes = 4
            else:
                raise ValueError("unknown mfma " + op)
        elif op.startswith("v_cmp"):
            self.kind = "valu"
            self.wr = R[0]
            for r in R[1:]:
                self.rd |= r
            if op.startswith("v_cmpx"):
                self.wr |= {("exec", 0)}
        elif op.startswith("v_"):
            self.kind = "valu"
            self.wr = R[0]
            for r in R[1:]:
                self.rd |= r
            if op in ("v_fmac_f32", "v_pk_fmac_f16", "v_dot2c_f32_bf16") or op.startswith("v_permlane"):
                self.rd |= R[0]
            if op.startswith("v_permlane") and "swap" in op:
                self.wr |= R[1]
            if op in ("v_add_co_u32", "v_sub_co_u32", "v_addc_co_u32", "v_subb_co_u32"):
                self.wr |= R[1]
                self.rd -= R[1] if op in ("v_add_co_u32", "v_sub_co_u32") else set()
            if "dst_unused:UNUSED_PRESERVE" in self.mods:
                self.rd |= R[0]
        elif op.startswith("ds_"):
            self.kind = "lds"
            if op.startswith("ds_read") or op.startswith("ds_bpermute") or op.startswith("ds_swizzle") or op.startswith("ds_permute"):
                self.wr = R[0]
                for r in R[1:]:
                    self.rd |= r
            else:
                for r in R:
                    self.rd |= r
        elif op.startswith("buffer_") or op.startswith("global_"):
            self.kind = "vmem"
            is_load = "_load_" in op or ("atomic" in op and "sc0" in self.mods)
            if "_load_" in op and " lds" in (" " + self.mods):
                for r in R:
                    self.rd |= r
                self.rd |= {("m0", 0)}
            elif is_load:
                self.wr = R[0]
                for r in R[1:]:
                    self.rd |= r
                if "d16" in op:
                    self.rd |= R[0]
            else:
                for r in R:
                    self.rd |= r
                if op.startswith("buffer_store"):
                    self.data_rd = R[0]
                elif op.startswith("global_store"):
                    self.data_rd = R[1]
        elif op.startswith("s_load") or op.startswith("s_buffer_load"):
            self.kind = "smem"
            self.wr = R[0]
            for r in R[1:]:
                self.rd |= r
        elif op in ("s_waitcnt", "s_nop", "s_barrier", "s_endpgm", "s_branch", "s_setprio", "s_sleep"):
            self.kind = "ctl"
        elif op.startswith("s_cbranch"):
            self.kind = "ctl"
        elif op.startswith("s_cmp") or op.startswith("s_bitcmp"):
            self.kind = "salu"
            for r in R:
                self.rd |= r
            self.wr = {("scc", 0)}
        elif op.startswith("s_"):
            self.kind = "salu"
            self.wr = R[0] | {("scc", 0)}
            for r in R[1:]:
                self.rd |= r
            if "saveexec" in op:
                self.wr |= {("exec", 0)}
                self.rd |= {("exec", 0)}
            if op in ("s_addk_i32", "s_mulk_i32"):
                self.rd |= R[0]
        else:
            raise ValueError("unknown op " + op)

    def render(self):
        s = self.op
        if self.args:
            s += " " + ", ".join(self.args)
        if self.mods:
            s += " " + self.mods
        if self.comment:
            s += "   ; " + self.comment
        return "    " + s


class Asm:
    def __init__(self):
        self.items = []

    def I(self, op, *args, mods="", c=""):
        args = [str(x) for x in args]
        self.items.append(Ins(op, args, mods, c))

    def __getattr__(self, name):
        if name.startswith("v_") or name.startswith("s_") or name.startswith("ds_") or \
           name.startswith("buffer_") or name.startswith("global_"):
            def f(*args, mods="", c=""):
                self.I(name, *args, mods=mods, c=c)
            return f
        raise AttributeError(name)

    def label(self, name):
        self.items.append(name + ":")

    def raw(self, text):
        self.items.append(text)

    def comment(self, text):
        self.items.append("    ; " + text)

    def finalize(self):
        out = []
        vm = []
        lg = []
        hist = []
        def flush_state():
            vm.clear(); lg.clear(); hist.clear()

        def emit(ins_text):
            out.append(ins_text)

        def add_wait(vmn=None, lgn=None):
            parts = []
            if vmn is not None:
                parts.append("vmcnt(%d)" % min(vmn, 63))
            if lgn is not None:
                parts.append("lgkmcnt(%d)" % min(lgn, 15))
            emit("    s_waitcnt " + " ".join(parts))
            hist.append(None)

        for it in self.items:
            if isinstance(it, str):
                s = it.strip()
                if s.endswith(":") and not s.startswith(";"):
                    if vm or lg:
                        add_wait(0 if vm else None, 0 if lg else None)
                    if any(h is not None and h.kind == "mfma" for h in hist[-20:]):
                        emit("    s_nop 15"); emit("    s_nop 3")
                    flush_state()
                out.append(it)
                continue
            ins = it
            if ins.op.startswith("s_cbranch") or ins.op == "s_branch":
                if (vm or lg) and "done" not in ins.args[0]:
                    add_wait(0 if vm else None, 0 if lg else None)
                    vm.clear(); lg.clear()
                if any(h is not None and h.kind == "mfma" for h in hist[-20:]) and "done" not in ins.args[0]:
                    emit("    s_nop 15"); emit("    s_nop 3")
                    hist.extend([None]*20)
            if ins.op == "s_waitcnt":
                txt = " ".join(ins.args) + " " + ins.mods
                m = re.search(r"vmcnt\((\d+)\)", txt)
                if m:
                    n = int(m.group(1))
                    while len(vm) > n:
                        vm.pop(0)
                m = re.search(r"lgkmcnt\((\d+)\)", txt)
                if m:
                    n = int(m.group(1))
                    while len(lg) > n:
                        lg.pop(0)
                emit(ins.render()); hist.append(ins)
                continue
            touched = ins.rd | ins.wr
            need_vm = None
            for i, (wr, _) in enumerate(vm):
                if wr & touched:
                    need_vm = len(vm) - 1 - i
            need_lg = None
            for i, (wr, is_smem) in enumerate(lg):
                if wr & touched:
                    if any(x[1] for x in lg):
                        need_lg = 0
                    else:
                        need_lg = len(lg) - 1 - i
            if need_vm is not None or need_lg is not None:
                add_wait(need_vm, need_lg)
                if need_vm is not None:
                    while len(vm) > min(need_vm, 63):
                        vm.pop(0)
                if need_lg is not None:
                    while len(lg) > min(need_lg, 15):
                        lg.pop(0)
            need = 0
            n = len(hist)
            for d in range(1, min(n, 24) + 1):
                p = hist[n - d]
                if p is None:
                    continue
                gap = d - 1
                req = 0
                if p.kind == "valu":
                    pw = p.wr
                    v_w = {r for r in pw if r[0] in "va"}
                    s_w = {r for r in pw if r[0] in ("s", "vcc")}
                    if ins.kind == "mfma" and (v_w & ins.rd):
                        req = max(req, 2)
                    if ins.kind == "vmem" and (s_w & ins.rd):
                        req = max(req, 5)
                    if ins.kind == "valu" and (s_w & ins.rd):
                        req = max(req, 2)
                        if ins.op.startswith("v_readlane") or ins.op.startswith("v_writelane"):
                            req = max(req, 4)
                    if ins.kind == "valu" and (ins.op.startswith("v_readfirstlane") or ins.op.startswith("v_readlane")) and (v_w & ins.rd):
                        req = max(req, 1)
                    if ins.kind == "valu" and ins.op.startswith("v_permlane") and (v_w & ins.rd):
                        req = max(req, 2)
                    if p.op in TRANS and ins.kind in ("valu", "mfma", "vmem", "lds") and (v_w & ins.rd) and ins.op not in TRANS:
                        req = max(req, 1)
                    if p.op in TRANS and ins.op in TRANS and (v_w & ins.rd):
                        req = max(req, 1)
                    if ins.kind == "valu" and ("dpp" in ins.mods or "row_" in ins.mods or "quad_perm" in ins.mods) and (v_w & ins.rd):
                        req = max(req, 2)
                    if ("exec", 0) in pw:
                        req = max(req, 5)
                    if "sdwa" in p.mods or "dst_sel" in p.mods or "op_sel" in p.mods:
                        if v_w & (ins.rd | ins.wr):
                            req = max(req, 1)
                elif p.kind == "salu":
                    if ("m0", 0) in p.wr and ("m0", 0) in ins.rd:
                        req = max(req, 1)
                elif p.kind == "mfma":
                    P = p.passes
                    dist_valu = {4: 8, 8: 12}[P]
                    if ins.kind == "mfma":
                        ab = regs_of(ins.args[1]) | regs_of(ins.args[2])
                        if p.wr & ab:
                            req = max(req, dist_valu)
                        if p.wr & ins.srcC:
                            if p.wr == ins.srcC and p.passes == ins.passes:
                                req = max(req, 8)
                            else:
                                req = max(req, {4: 6, 8: 10}[P])
                    else:
                        if p.wr & (ins.rd | ins.wr):
                            req = max(req, dist_valu)
                        if p.srcC & ins.wr and ins.kind == "valu":
                            req = max(req, {4: 3, 8: 7}[P])
                elif p.kind == "vmem":
                    if p.data_rd and ins.kind == "valu" and (p.data_rd & ins.wr) and len(p.data_rd) >= 3:
                        req = max(req, 2)
                if req > gap:
                    need = max(need, req - gap)
            while need > 0:
                k = min(need, 16)
                emit("    s_nop %d" % (k - 1))
                for _ in range(k):
                    hist.append(None)
                need -= k
            emit(ins.render())
            hist.append(ins)
            if len(hist) > 64:
                del hist[:32]
            if ins.kind == "vmem":
                vm.append((set(ins.wr), ins.data_rd))
            elif ins.kind == "lds":
                lg.append((set(ins.wr), False))
            elif ins.kind == "smem":
                lg.append((set(ins.wr), True))
            if ins.op in ("s_endpgm", "s_branch"):
                flush_state()
        return "\n".join(out) + "\n"


def vr(a, n=1):
    return "v%d" % a if n == 1 else "v[%d:%d]" % (a, a + n - 1)


def sr(a, n=1):
    return "s%d" % a if n == 1 else "s[%d:%d]" % (a, a + n - 1)
```

```python
import sys
from asmgen import Asm, vr, sr

S = 2048
D = 448
NQKV = 1344
F = 1792

WS_QKV = 0
WS_STATS = 0x540000
WS_R = 0x544000
WS_O = 0x548000
WS_H = 0x708000
WS_SEL = 0x70A000
WS_END = 0x70B000

X_BYTES = S * D * 2
WQKV_BYTES = D * NQKV * 2
WO_BYTES = D * D * 2
WG_BYTES = D * F * 2

SA = 912


def srd(a, sb, sp, size):
    a.s_mov_b32(sr(sb), sr(sp))
    a.s_mov_b32(sr(sb + 1), sr(sp + 1))
    a.s_mov_b32(sr(sb + 2), "0x%x" % size)
    a.s_mov_b32(sr(sb + 3), "0x00020000")


def rne_bf16_scalar(a, vd, vs):
    a.v_cvt_pk_bf16_f32(vr(vd), vr(vs), vr(vs))
    a.v_lshlrev_b32(vr(vd), 16, vr(vd))


def xlane_sum(a, v, vtmp, vaddr16, vaddr32):
    a.ds_bpermute_b32(vr(vtmp), vr(vaddr16), vr(v))
    a.v_add_f32(vr(v), vr(v), vr(vtmp))
    a.ds_bpermute_b32(vr(vtmp), vr(vaddr32), vr(v))
    a.v_add_f32(vr(v), vr(v), vr(vtmp))


def gen_k1():
    a = Asm()
    SW = 416
    WBUF = 64 * SW
    A_BASE = 2 * WBUF
    a.label("k1_kernel")
    a.s_cmp_ge_u32("s2", 7)
    a.s_cbranch_scc1("k1_done")
    a.s_load_dwordx4("s[4:7]", "s[0:1]", 0)
    a.s_load_dwordx2("s[8:9]", "s[0:1]", 32)
    a.s_load_dwordx2("s[10:11]", "s[0:1]", 80)
    a.v_and_b32("v1", 63, "v0")
    a.v_and_b32("v2", 15, "v0")
    a.v_bfe_u32("v3", "v0", 4, 2)
    a.v_lshrrev_b32("v5", 6, "v0")
    a.v_readfirstlane_b32("s28", "v5")
    a.s_waitcnt(mods="lgkmcnt(0)")
    srd(a, 12, 4, X_BYTES)
    srd(a, 16, 6, WQKV_BYTES)
    srd(a, 20, 10, WS_END)
    srd(a, 24, 8, D * 2)
    a.s_lshl_b32("s29", "s3", 6)
    a.s_lshl_b32("s30", "s28", 4)
    a.s_add_u32("s29", "s29", "s30")
    a.v_add_u32("v6", "s29", "v2")
    a.s_movk_i32("s31", 896)
    a.v_mul_lo_u32("v4", "v6", "s31")
    a.v_lshl_add_u32("v4", "v3", 4, "v4")
    for t in range(14):
        a.buffer_load_dwordx4(vr(16 + 4 * t, 4), "v4", "s[12:15]", 0, mods="offen offset:%d" % (64 * t))
    a.v_lshrrev_b32("v7", 3, "v0")
    a.v_and_b32("v8", 7, "v0")
    a.s_movk_i32("s32", 2688)
    a.v_mul_lo_u32("v9", "v7", "s32")
    a.v_lshl_add_u32("v9", "v8", 4, "v9")
    a.v_add_u32("v10", "0x15000", "v9")
    a.s_mul_i32("s33", "s2", 384)
    a.v_mul_u32_u24("v11", SW, "v7")
    a.v_lshl_add_u32("v11", "v8", 4, "v11")

    def w_loads(ch):
        a.s_add_u32("s34", "s33", ch * 64 * 2688)
        for i in range(2):
            for j in range(3):
                a.buffer_load_dwordx4(vr(184 + 4 * (3 * i + j), 4), "v9" if i == 0 else "v10", "s[16:19]", "s34",
                                      mods="offen offset:%d" % (128 * j))

    def w_writes(buf):
        for i in range(2):
            for j in range(3):
                a.ds_write_b128("v11", vr(184 + 4 * (3 * i + j), 4),
                                mods="offset:%d" % (buf * WBUF + 32 * i * SW + 128 * j))

    w_loads(0)
    a.v_xor_b32("v12", 16, "v1")
    a.v_lshlrev_b32("v12", 2, "v12")
    a.v_xor_b32("v13", 32, "v1")
    a.v_lshlrev_b32("v13", 2, "v13")
    for i in range(56):
        a.v_lshlrev_b32(vr(72 + 2 * i), 16, vr(16 + i))
        a.v_and_b32(vr(73 + 2 * i), "0xffff0000", vr(16 + i))
    a.v_add_f32("v14", "v72", "v73")
    for i in range(2, 112):
        a.v_add_f32("v14", "v14", vr(72 + i))
    xlane_sum(a, 14, 15, 12, 13)
    a.v_mul_f32("v14", "0x3b124925", "v14")
    a.v_mov_b32("v208", 0)
    for i in range(112):
        a.v_sub_f32("v209", vr(72 + i), "v14")
        a.v_fmac_f32("v208", "v209", "v209")
    xlane_sum(a, 208, 15, 12, 13)
    a.v_mul_f32("v208", "0x3b124925", "v208")
    rne_bf16_scalar(a, 14, 14)
    rne_bf16_scalar(a, 208, 208)
    a.v_add_f32("v208", "0x3727c5ac", "v208")
    rne_bf16_scalar(a, 208, 208)
    a.v_sqrt_f32("v208", "v208")
    rne_bf16_scalar(a, 208, 208)
    a.v_rcp_f32("v208", "v208")
    for i in range(56):
        lo, hi = vr(72 + 2 * i), vr(73 + 2 * i)
        a.v_sub_f32(lo, lo, "v14")
        a.v_sub_f32(hi, hi, "v14")
        a.v_cvt_pk_bf16_f32(vr(16 + i), lo, hi)
        a.v_lshlrev_b32(lo, 16, vr(16 + i))
        a.v_and_b32(hi, "0xffff0000", vr(16 + i))
        a.v_mul_f32(lo, lo, "v208")
        a.v_mul_f32(hi, hi, "v208")
        a.v_cvt_pk_bf16_f32(vr(16 + i), lo, hi)
    a.v_mul_u32_u24("v15", SA, "v2")
    a.s_mul_i32("s35", "s28", 16 * SA)
    a.s_add_u32("s35", "s35", A_BASE)
    a.v_add_u32("v15", "s35", "v15")
    a.v_and_b32("v209", 1, "v3")
    a.v_lshl_add_u32("v15", "v209", 5, "v15")
    a.v_lshrrev_b32("v209", 1, "v3")
    a.v_lshl_add_u32("v15", "v209", 3, "v15")
    for t in range(14):
        a.ds_write2_b64("v15", vr(16 + 4 * t, 2), vr(18 + 4 * t, 2),
                        mods="offset0:%d offset1:%d" % (8 * t, 8 * t + 2))
    a.s_cmp_lg_u32("s2", 0)
    a.s_cbranch_scc1("k1_skip_r")
    a.v_lshlrev_b32("v209", 4, "v3")
    for t in range(14):
        a.buffer_load_dwordx4(vr(120 + 4 * t, 4), "v209", "s[24:27]", 0, mods="offen offset:%d" % (64 * t))
    a.v_mov_b32("v210", 0)
    for i in range(56):
        a.v_dot2_f32_bf16("v210", vr(16 + i), vr(120 + i), "v210")
    xlane_sum(a, 210, 211, 12, 13)
    rne_bf16_scalar(a, 210, 210)
    a.v_cmp_gt_u32("vcc", 16, "v1")
    a.s_and_saveexec_b64("s[36:37]", "vcc")
    a.v_lshlrev_b32("v211", 2, "v6")
    a.v_add_u32("v212", "0x%x" % WS_R, "v211")
    a.buffer_store_dword("v210", "v212", "s[20:23]", 0, mods="offen")
    a.v_lshlrev_b32("v211", 3, "v6")
    a.v_add_u32("v212", "0x%x" % WS_STATS, "v211")
    a.v_mov_b32("v214", "v14")
    a.v_mov_b32("v215", "v208")
    a.buffer_store_dwordx2("v[214:215]", "v212", "s[20:23]", 0, mods="offen")
    a.s_mov_b64("exec", "s[36:37]")
    a.label("k1_skip_r")
    w_writes(0)
    w_loads(1)
    a.v_mul_u32_u24("v4", SA, "v2")
    a.v_lshl_add_u32("v4", "v3", 4, "v4")
    a.v_add_u32("v4", A_BASE, "v4")
    a.v_bfe_u32("v5", "v0", 2, 4)
    a.v_mul_u32_u24("v5", SW, "v5")
    a.v_and_b32("v7", 3, "v0")
    a.v_lshl_add_u32("v5", "v7", 3, "v5")
    a.s_mul_i32("s35", "s28", 96)
    a.v_add_u32("v5", "s35", "v5")
    ACC = 72
    for i in range(48):
        a.v_mov_b32(vr(ACC + i), 0)
    a.s_waitcnt(mods="lgkmcnt(0)")
    a.s_barrier()
    AF, BF = 120, 152

    def frag_reads(step, st):
        ch, tl = step // 2, step % 2
        buf = ch % 2
        for mb in range(4):
            a.ds_read_b128(vr(AF + 16 * st + 4 * mb, 4), "v4", mods="offset:%d" % (64 * step + mb * 16 * SA))
        for nb in range(3):
            for h in range(2):
                a.ds_read_b64_tr_b16(vr(BF + 12 * st + 4 * nb + 2 * h, 2), "v5",
                                     mods="offset:%d" % (buf * WBUF + (32 * tl + 16 * h) * SW + 32 * nb))

    def mfmas(st):
        for mb in range(4):
            for nb in range(3):
                acc = vr(ACC + 4 * (3 * mb + nb), 4)
                a.v_mfma_f32_16x16x32_bf16(acc, vr(BF + 12 * st + 4 * nb, 4), vr(AF + 16 * st + 4 * mb, 4), acc)

    for ch in range(7):
        frag_reads(2 * ch, 0)
        frag_reads(2 * ch + 1, 1)
        mfmas(0)
        mfmas(1)
        if ch + 1 < 7:
            w_writes((ch + 1) % 2)
            if ch + 2 < 7:
                w_loads(ch + 2)
            a.s_waitcnt(mods="lgkmcnt(0)")
            a.s_barrier()
    a.s_mul_i32("s35", "s2", 192)
    a.s_mul_i32("s36", "s28", 48)
    a.s_add_u32("s35", "s35", "s36")
    a.v_lshlrev_b32("v5", 2, "v3")
    a.v_add_u32("v5", "s35", "v5")
    a.s_lshl_b32("s36", "s3", 6)
    a.v_add_u32("v7", "s36", "v2")
    a.v_mul_u32_u24("v7", 56, "v7")
    a.s_mov_b32("s37", 9363)
    a.s_mov_b32("s38", 114632)
    for nb in range(3):
        a.v_add_u32("v8", 16 * nb, "v5")
        a.v_mul_lo_u32("v9", "v8", "s37")
        a.v_lshrrev_b32("v9", 18, "v9")
        a.v_mul_lo_u32("v9", "v9", "s38")
        a.v_lshl_add_u32("v9", "v8", 1, "v9")
        a.v_add_u32(vr(10 + nb), "v9", "v7")
    for mb in range(4):
        for nb in range(3):
            acc = ACC + 4 * (3 * mb + nb)
            a.v_cvt_pk_bf16_f32(vr(acc), vr(acc), vr(acc + 1))
            a.v_cvt_pk_bf16_f32(vr(acc + 1), vr(acc + 2), vr(acc + 3))
            a.buffer_store_dwordx2(vr(acc, 2), vr(10 + nb), "s[20:23]", 0, mods="offen offset:%d" % (896 * mb))
    a.label("k1_done")
    a.s_endpgm()
    return a, 111616


NF1 = 28
import struct, math
def f32hex(x):
    return "0x%08x" % struct.unpack("<I", struct.pack("<f", x))[0]
NEG = "0xf149f2ca"

def gen_k2(with_ffn=True):
    a = Asm()
    HS = 114688
    VB = 24576
    a.label("k2_kernel")
    a.s_cmp_ge_u32("s2", 256)
    a.s_cbranch_scc1("k2_ffn")
    a.s_load_dwordx2("s[4:5]", "s[0:1]", 80)
    a.v_and_b32("v1", 63, "v0")
    a.v_and_b32("v2", 15, "v0")
    a.v_bfe_u32("v3", "v0", 4, 2)
    a.v_lshrrev_b32("v5", 6, "v0")
    a.v_readfirstlane_b32("s28", "v5")
    a.s_lshr_b32("s29", "s2", 4)
    a.s_and_b32("s30", "s2", 15)
    a.s_waitcnt(mods="lgkmcnt(0)")
    srd(a, 8, 4, WS_END)
    a.s_mul_i32("s31", "s29", HS)
    a.s_mul_i32("s32", "s30", 128 * 56)
    a.s_add_u32("s31", "s31", "s32")
    a.s_add_u32("s33", "s31", 16 * HS - 256 * 56)
    a.s_add_u32("s34", "s33", 16 * HS)
    a.v_lshlrev_b32("v4", 4, "v0")
    a.v_add_u32("v5", 8192, "v4")
    a.v_add_u32("v6", 16384, "v4")
    for i, vo in enumerate(("v4", "v5", "v6")):
        a.buffer_load_dwordx4(vr(16 + 4 * i, 4), vo, "s[8:11]", "s33", mods="offen")
    for i, vo in enumerate(("v4", "v5", "v6")):
        a.buffer_load_dwordx4(vr(28 + 4 * i, 4), vo, "s[8:11]", "s34", mods="offen")
    a.s_lshl_b32("s35", "s28", 4)
    a.v_add_u32("v7", "s35", "v2")
    a.v_mul_u32_u24("v7", 56, "v7")
    a.v_lshl_add_u32("v7", "v3", 4, "v7")
    a.buffer_load_dwordx2("v[40:41]", "v7", "s[8:11]", "s31", mods="offen")
    a.buffer_load_dwordx2("v[42:43]", "v7", "s[8:11]", "s31", mods="offen offset:8")
    a.v_cmp_eq_u32("vcc", 3, "v3")
    a.v_cndmask_b32("v42", "v42", 0, "vcc")
    a.v_cndmask_b32("v43", "v43", 0, "vcc")
    for i in range(3):
        a.ds_write_b128("v4", vr(16 + 4 * i, 4), mods="offset:%d" % (8192 * i))
    for i in range(3):
        a.ds_write_b128("v4", vr(28 + 4 * i, 4), mods="offset:%d" % (VB + 8192 * i))
    a.s_lshl_b32("s36", "s30", 3)
    a.s_add_u32("s36", "s36", "s28")
    a.s_sub_i32("s36", 16, "s36")
    a.s_max_i32("s36", "s36", 0)
    a.s_mov_b32("s37", NEG)
    a.v_lshlrev_b32("v8", 2, "v3")
    a.v_sub_u32("v8", "v8", "v2")
    a.s_cmp_gt_i32("s36", 0)
    a.s_cselect_b32("s38", -1000, 0)
    a.v_add_u32("v9", "s38", "v8")
    a.v_mov_b32("v10", "s37")
    for r in range(4):
        a.v_cmp_lt_i32("vcc", -r, "v9")
        a.v_cndmask_b32(vr(44 + r), "v10", 0, "vcc")
    for r in range(4):
        a.v_cmp_ge_i32("vcc", -r, "v8")
        a.v_cndmask_b32(vr(48 + r), "v10", 0, "vcc")
    a.s_waitcnt(mods="lgkmcnt(0)")
    a.s_barrier()
    SR = 64
    KF = 136
    for b in range(17):
        a.ds_read_b64(vr(KF + 4 * b, 2), "v7", mods="offset:%d" % (896 * b))
        a.ds_read_b64(vr(KF + 4 * b + 2, 2), "v7", mods="offset:%d" % (896 * b + 8))
    for b in range(17):
        if b == 0:
            cop = "v[44:47]"
        elif b == 16:
            cop = "v[48:51]"
        else:
            a.s_cmp_gt_i32("s36", b)
            a.s_cselect_b32("s38", "s37", 0)
            for r in range(4):
                a.v_mov_b32(vr(52 + 4 * (b % 2) + r), "s38")
            cop = vr(52 + 4 * (b % 2), 4)
        a.v_mfma_f32_16x16x32_bf16(vr(SR + 4 * b, 4), vr(KF + 4 * b, 4), "v[40:43]", cop)
    a.v_bfe_u32("v11", "v0", 2, 4)
    a.v_add_u32("v11", "s35", "v11")
    a.v_mul_u32_u24("v11", 56, "v11")
    a.v_and_b32("v12", 3, "v0")
    a.v_lshl_add_u32("v11", "v12", 3, "v11")
    a.v_add_u32("v11", VB, "v11")
    a.v_max3_f32("v12", vr(SR), vr(SR + 1), vr(SR + 2))
    i = 3
    while i + 1 < 68:
        a.v_max3_f32("v12", "v12", vr(SR + i), vr(SR + i + 1))
        i += 2
    if i < 68:
        a.v_max_f32("v12", "v12", vr(SR + i))
    a.v_xor_b32("v13", 16, "v1")
    a.v_lshlrev_b32("v13", 2, "v13")
    a.v_xor_b32("v14", 32, "v1")
    a.v_lshlrev_b32("v14", 2, "v14")
    a.ds_bpermute_b32("v15", "v13", "v12")
    a.v_max_f32("v12", "v12", "v15")
    a.ds_bpermute_b32("v15", "v14", "v12")
    a.v_max_f32("v12", "v12", "v15")
    c1 = (28 ** -0.5) * math.log2(math.e)
    a.s_mov_b32("s39", f32hex(c1))
    a.v_mul_f32("v12", "s39", "v12")
    for j in range(8):
        for db in range(2):
            for h in range(2):
                a.ds_read_b64_tr_b16(vr(KF + 8 * j + 4 * db + 2 * h, 2), "v11",
                                     mods="offset:%d" % ((32 * j + 16 * h) * 56 + 32 * db))
    for db in range(2):
        a.ds_read_b64_tr_b16(vr(KF + 64 + 2 * db, 2), "v11", mods="offset:%d" % (256 * 56 + 32 * db))
    for i in range(68):
        a.v_fma_f32(vr(SR + i), vr(SR + i), "s39", "-v12")
    for i in range(68):
        a.v_exp_f32(vr(SR + i), vr(SR + i))
    a.v_add_f32("v13", vr(SR), vr(SR + 1))
    for i in range(2, 68):
        a.v_add_f32("v13", "v13", vr(SR + i))
    a.v_xor_b32("v15", 16, "v1")
    a.v_lshlrev_b32("v15", 2, "v15")
    a.ds_bpermute_b32("v16", "v15", "v13")
    a.v_add_f32("v13", "v13", "v16")
    a.ds_bpermute_b32("v16", "v14", "v13")
    a.v_add_f32("v13", "v13", "v16")
    a.v_rcp_f32("v13", "v13")
    for i in range(68):
        a.v_mul_f32(vr(SR + i), vr(SR + i), "v13")
    PK = 16
    for i in range(34):
        a.v_cvt_pk_bf16_f32(vr(PK + i), vr(SR + 2 * i), vr(SR + 2 * i + 1))
    OA = 52
    for j in range(8):
        for db in range(2):
            a.v_mfma_f32_16x16x32_bf16(vr(OA + 4 * db, 4), vr(KF + 8 * j + 4 * db, 4), vr(PK + 4 * j, 4),
                                       vr(OA + 4 * db, 4) if j > 0 else 0)
    for db in range(2):
        a.v_mfma_f32_16x16x16_bf16(vr(OA + 4 * db, 4), vr(KF + 64 + 2 * db, 2), vr(PK + 32, 2), vr(OA + 4 * db, 4))
    a.s_lshl_b32("s40", "s30", 7)
    a.s_add_u32("s40", "s40", "s35")
    a.v_add_u32("v4", "s40", "v2")
    a.s_movk_i32("s41", 896)
    a.v_mul_lo_u32("v4", "v4", "s41")
    a.v_lshl_add_u32("v4", "v3", 3, "v4")
    a.s_mul_i32("s42", "s29", 56)
    a.s_add_u32("s42", "s42", WS_O)
    a.v_cvt_pk_bf16_f32("v60", vr(OA), vr(OA + 1))
    a.v_cvt_pk_bf16_f32("v61", vr(OA + 2), vr(OA + 3))
    a.v_cvt_pk_bf16_f32("v62", vr(OA + 4), vr(OA + 5))
    a.v_cvt_pk_bf16_f32("v63", vr(OA + 6), vr(OA + 7))
    a.buffer_store_dwordx2("v[60:61]", "v4", "s[8:11]", "s42", mods="offen")
    a.v_cmp_gt_u32("vcc", 48, "v1")
    a.s_and_saveexec_b64("s[44:45]", "vcc")
    a.buffer_store_dwordx2("v[62:63]", "v4", "s[8:11]", "s42", mods="offen offset:32")
    a.s_endpgm()
    a.label("k2_ffn")
    if with_ffn:
        gen_ffn1(a)
    a.s_endpgm()
    return a, 65536 + 2048


LOG2E = 1.4426950408889634

def sigmoid_bf16(a, vd, vx, vt):
    a.v_mul_f32(vr(vt), f32hex(-LOG2E), vr(vx))
    a.v_exp_f32(vr(vt), vr(vt))
    a.v_add_f32(vr(vt), 1.0, vr(vt))
    a.v_rcp_f32(vr(vt), vr(vt))
    rne_bf16_scalar(a, vd, vt)

def gen_ffn1(a):
    TOP = 65536
    SUMS = 65536 + 64
    a.s_sub_u32("s29", "s2", 256)
    a.s_cmp_ge_u32("s29", NF1)
    a.s_cbranch_scc1("k2_done")
    a.s_load_dwordx2("s[4:5]", "s[0:1]", 80)
    a.s_load_dwordx2("s[6:7]", "s[0:1]", 0)
    a.s_load_dwordx4("s[12:15]", "s[0:1]", 40)
    a.v_lshlrev_b32("v4", 4, "v0")
    a.v_mov_b32("v5", TOP)
    a.v_mov_b32("v6", 0)
    a.v_mov_b32("v7", 0)
    a.ds_write_b64("v5", "v[6:7]")
    a.s_waitcnt(mods="lgkmcnt(0)")
    srd(a, 8, 4, WS_END)
    srd(a, 16, 6, X_BYTES)
    srd(a, 20, 12, WG_BYTES)
    srd(a, 24, 14, WG_BYTES)
    a.s_mov_b32("s30", WS_R)
    a.buffer_load_dwordx4("v[16:19]", "v4", "s[8:11]", "s30", mods="offen")
    a.s_barrier()
    a.v_lshlrev_b32("v8", 2, "v0")
    for e in range(4):
        a.v_ashrrev_i32("v9", 31, vr(16 + e))
        a.v_or_b32("v9", "0x80000000", "v9")
        a.v_xor_b32("v9", "v9", vr(16 + e))
        a.v_and_b32("v9", "0xffff0000", "v9")
        a.v_sub_u32("v10", 0xFFFF - e, "v8")
        a.v_or_b32(vr(20 + e), "v9", "v10")
    a.v_max_u32("v10", "v20", "v21")
    a.v_min_u32("v11", "v20", "v21")
    for e in (22, 23):
        a.v_min_u32("v12", "v10", vr(e))
        a.v_max_u32("v10", "v10", vr(e))
        a.v_max_u32("v11", "v11", "v12")
    a.ds_max_u32("v5", "v10")
    a.s_waitcnt(mods="lgkmcnt(0)")
    a.s_barrier()
    a.ds_read_b32("v12", "v5")
    a.v_cmp_eq_u32("vcc", "v10", "v12")
    a.v_cndmask_b32("v13", "v10", "v11", "vcc")
    a.ds_max_u32("v5", "v13", mods="offset:4")
    a.s_waitcnt(mods="lgkmcnt(0)")
    a.s_barrier()
    a.ds_read_b32("v13", "v5", mods="offset:4")
    a.v_and_b32("v12", "0xffff", "v12")
    a.v_sub_u32("v12", "0xffff", "v12")
    a.v_and_b32("v13", "0xffff", "v13")
    a.v_sub_u32("v13", "0xffff", "v13")
    a.s_mov_b32("s31", WS_STATS)
    a.v_lshlrev_b32("v14", 3, "v12")
    a.v_lshlrev_b32("v15", 3, "v13")
    a.buffer_load_dwordx2("v[24:25]", "v14", "s[8:11]", "s31", mods="offen")
    a.buffer_load_dwordx2("v[26:27]", "v15", "s[8:11]", "s31", mods="offen")
    a.v_lshlrev_b32("v14", 2, "v12")
    a.v_lshlrev_b32("v15", 2, "v13")
    a.buffer_load_dword("v28", "v14", "s[8:11]", "s30", mods="offen")
    a.buffer_load_dword("v29", "v15", "s[8:11]", "s30", mods="offen")
    a.v_lshrrev_b32("v8", 3, "v0")
    a.s_movk_i32("s32", 896)
    a.v_mul_lo_u32("v14", "v12", "s32")
    a.v_lshl_add_u32("v14", "v8", 1, "v14")
    a.v_mul_lo_u32("v15", "v13", "s32")
    a.v_lshl_add_u32("v15", "v8", 1, "v15")
    for it in range(7):
        a.buffer_load_ushort(vr(32 + it), "v14", "s[16:19]", 0, mods="offen offset:%d" % (128 * it))
        a.buffer_load_ushort(vr(40 + it), "v15", "s[16:19]", 0, mods="offen offset:%d" % (128 * it))
    a.s_movk_i32("s33", 3584)
    a.v_mul_lo_u32("v9", "v8", "s33")
    a.v_and_b32("v10", 7, "v0")
    a.v_lshl_add_u32("v9", "v10", 4, "v9")
    a.s_lshl_b32("s34", "s29", 7)
    for it in range(7):
        a.s_add_u32("s35", "s34", it * 64 * 3584)
        a.buffer_load_dwordx4(vr(112 + 8 * it, 4), "v9", "s[20:23]", "s35", mods="offen")
        a.buffer_load_dwordx4(vr(116 + 8 * it, 4), "v9", "s[24:27]", "s35", mods="offen")
    for it in range(7):
        for (base, m, rs) in ((32, 24, 25), (40, 26, 27)):
            x = vr(base + it)
            a.v_lshlrev_b32(x, 16, x)
            a.v_sub_f32(x, x, vr(m))
            a.v_cvt_pk_bf16_f32(x, x, x)
            a.v_lshlrev_b32(x, 16, x)
            a.v_mul_f32(x, x, vr(rs))
            a.v_cvt_pk_bf16_f32(x, x, x)
            a.v_lshlrev_b32(x, 16, x)
    ACC = 64
    for i in range(32):
        a.v_mov_b32(vr(ACC + i), 0)
    for it in range(7):
        for mat in range(2):
            for q in range(4):
                w = vr(112 + 8 * it + 4 * mat + q)
                a.v_lshlrev_b32("v48", 16, w)
                a.v_and_b32("v49", "0xffff0000", w)
                for tok in range(2):
                    xv = vr((32, 40)[tok] + it)
                    a.v_fmac_f32(vr(ACC + 16 * mat + 8 * tok + 2 * q), xv, "v48")
                    a.v_fmac_f32(vr(ACC + 16 * mat + 8 * tok + 2 * q + 1), xv, "v49")
    a.v_lshlrev_b32("v4", 2, "v0")
    for i in range(32):
        a.ds_write_b32("v4", vr(ACC + i), mods="offset:%d" % (2048 * i))
    a.s_waitcnt(mods="lgkmcnt(0)")
    a.s_barrier()
    a.v_cmp_gt_u32("vcc", 256, "v0")
    a.s_and_saveexec_b64("s[36:37]", "vcc")
    a.s_cbranch_execz("k2_f1_skip1")
    a.v_lshrrev_b32("v5", 3, "v0")
    a.v_lshlrev_b32("v5", 11, "v5")
    a.v_lshl_add_u32("v5", "v10", 2, "v5")
    for kg in range(64):
        a.ds_read_b32(vr(112 + kg), "v5", mods="offset:%d" % (32 * kg))
    a.v_add_f32("v48", "v112", "v113")
    for kg in range(2, 64):
        a.v_add_f32("v48", "v48", vr(112 + kg))
    a.v_add_u32("v6", SUMS, "v4")
    a.ds_write_b32("v6", "v48")
    a.label("k2_f1_skip1")
    a.s_mov_b64("exec", "s[36:37]")
    a.s_waitcnt(mods="lgkmcnt(0)")
    a.s_barrier()
    a.v_cmp_gt_u32("vcc", 128, "v0")
    a.s_and_saveexec_b64("s[36:37]", "vcc")
    a.s_cbranch_execz("k2_f1_skip2")
    a.v_add_u32("v6", SUMS, "v4")
    a.ds_read_b32("v48", "v6")
    a.ds_read_b32("v49", "v6", mods="offset:512")
    rne_bf16_scalar(a, 48, 48)
    rne_bf16_scalar(a, 49, 49)
    sigmoid_bf16_raw = None
    a.v_mul_f32("v50", f32hex(-LOG2E), "v48")
    a.v_exp_f32("v50", "v50")
    a.v_add_f32("v50", 1.0, "v50")
    a.v_rcp_f32("v50", "v50")
    a.v_mul_f32("v50", "v50", "v48")
    rne_bf16_scalar(a, 50, 50)
    a.v_mul_f32("v50", "v50", "v49")
    a.v_cvt_pk_bf16_f32("v50", "v50", "v50")
    a.v_lshrrev_b32("v5", 6, "v0")
    a.v_mul_u32_u24("v5", 1792, "v5")
    a.v_lshl_add_u32("v5", "v10", 3, "v5")
    a.v_bfe_u32("v6", "v0", 3, 3)
    a.v_add_u32("v5", "v5", "v6")
    a.s_lshl_b32("s38", "s29", 6)
    a.v_add_u32("v5", "s38", "v5")
    a.v_lshlrev_b32("v5", 1, "v5")
    a.s_mov_b32("s39", WS_H)
    a.buffer_store_short("v50", "v5", "s[8:11]", "s39", mods="offen")
    a.label("k2_f1_skip2")
    a.s_mov_b64("exec", "s[36:37]")
    a.s_cmp_lg_u32("s29", 0)
    a.s_cbranch_scc1("k2_done")
    sigmoid_bf16(a, 28, 28, 48)
    sigmoid_bf16(a, 29, 29, 48)
    a.v_mov_b32("v50", "v12")
    a.v_mov_b32("v51", "v13")
    a.v_mov_b32("v52", "v28")
    a.v_mov_b32("v53", "v29")
    a.v_mov_b32("v5", WS_SEL)
    a.v_cmp_eq_u32("vcc", 0, "v0")
    a.s_and_saveexec_b64("s[36:37]", "vcc")
    a.buffer_store_dwordx4("v[50:53]", "v5", "s[8:11]", 0, mods="offen")
    a.label("k2_done")


OUT_BYTES = S * D * 2

def final_combine(a, vout, vx, vattn, vm, vrs, vt, vy2=None):
    rne_bf16_scalar(a, vattn, vattn)
    a.v_add_f32(vr(vattn), vr(vx), vr(vattn))
    rne_bf16_scalar(a, vattn, vattn)
    a.v_sub_f32(vr(vt), vr(vx), vr(vm))
    rne_bf16_scalar(a, vt, vt)
    a.v_mul_f32(vr(vt), vr(vt), vr(vrs))
    rne_bf16_scalar(a, vt, vt)
    if vy2 is not None:
        a.v_add_f32(vr(vt), vr(vt), vr(vy2))
        rne_bf16_scalar(a, vt, vt)
    a.v_add_f32(vr(vout), vr(vattn), vr(vt))


def gen_k3():
    a = Asm()
    SW3 = 160
    A_BASE = 448 * SW3
    a.label("k3_kernel")
    a.s_cmp_ge_u32("s2", 8)
    a.s_cbranch_scc1("k3_done")
    a.s_cmp_eq_u32("s2", 7)
    a.s_cbranch_scc1("k3_ffn")
    a.s_load_dwordx2("s[4:5]", "s[0:1]", 80)
    a.s_load_dwordx2("s[6:7]", "s[0:1]", 16)
    a.s_load_dwordx2("s[8:9]", "s[0:1]", 0)
    a.s_load_dwordx2("s[10:11]", "s[0:1]", 64)
    a.v_and_b32("v1", 63, "v0")
    a.v_and_b32("v2", 15, "v0")
    a.v_bfe_u32("v3", "v0", 4, 2)
    a.v_lshrrev_b32("v5", 6, "v0")
    a.v_readfirstlane_b32("s28", "v5")
    a.s_waitcnt(mods="lgkmcnt(0)")
    srd(a, 12, 4, WS_END)
    srd(a, 16, 6, WO_BYTES)
    srd(a, 20, 8, X_BYTES)
    srd(a, 24, 10, OUT_BYTES)
    a.s_add_u32("s50", "s4", WS_SEL)
    a.s_addc_u32("s51", "s5", 0)
    a.s_load_dwordx2("s[40:41]", "s[50:51]", 0)
    a.s_lshl_b32("s29", "s3", 6)
    a.s_lshl_b32("s30", "s28", 4)
    a.s_add_u32("s29", "s29", "s30")
    a.v_add_u32("v6", "s29", "v2")
    a.s_movk_i32("s31", 896)
    a.v_mul_lo_u32("v4", "v6", "s31")
    a.v_lshl_add_u32("v4", "v3", 4, "v4")
    a.s_mov_b32("s32", WS_O)
    for t in range(14):
        a.buffer_load_dwordx4(vr(16 + 4 * t, 4), "v4", "s[12:15]", "s32", mods="offen offset:%d" % (64 * t))
    a.v_lshrrev_b32("v7", 3, "v0")
    a.v_and_b32("v8", 7, "v0")
    a.v_mul_u32_u24("v9", 896, "v7")
    a.v_lshl_add_u32("v9", "v8", 4, "v9")
    a.s_lshl_b32("s33", "s2", 7)
    for i in range(14):
        a.s_add_u32("s34", "s33", 28672 * i)
        a.buffer_load_dwordx4(vr(72 + 4 * i, 4), "v9", "s[16:19]", "s34", mods="offen")
    a.v_mul_u32_u24("v15", SA, "v2")
    a.s_mul_i32("s35", "s28", 16 * SA)
    a.s_add_u32("s35", "s35", A_BASE)
    a.v_add_u32("v15", "s35", "v15")
    a.v_and_b32("v10", 1, "v3")
    a.v_lshl_add_u32("v15", "v10", 5, "v15")
    a.v_lshrrev_b32("v10", 1, "v3")
    a.v_lshl_add_u32("v15", "v10", 3, "v15")
    for t in range(14):
        a.ds_write2_b64("v15", vr(16 + 4 * t, 2), vr(18 + 4 * t, 2), mods="offset0:%d offset1:%d" % (8 * t, 8 * t + 2))
    a.v_mul_u32_u24("v11", SW3, "v7")
    a.v_lshl_add_u32("v11", "v8", 4, "v11")
    a.v_add_u32("v12", 7 * 32 * SW3, "v11")
    for i in range(14):
        a.ds_write_b128("v11" if i < 7 else "v12", vr(72 + 4 * i, 4), mods="offset:%d" % (32 * SW3 * (i % 7)))
    a.s_lshr_b32("s36", "s28", 1)
    a.s_and_b32("s37", "s28", 1)
    a.v_mul_u32_u24("v4", SA, "v2")
    a.v_lshl_add_u32("v4", "v3", 4, "v4")
    a.s_mul_i32("s38", "s36", 32 * SA)
    a.s_add_u32("s38", "s38", A_BASE)
    a.v_add_u32("v4", "s38", "v4")
    a.v_bfe_u32("v5", "v0", 2, 4)
    a.v_mul_u32_u24("v5", SW3, "v5")
    a.v_and_b32("v7", 3, "v0")
    a.v_lshl_add_u32("v5", "v7", 3, "v5")
    a.s_lshl_b32("s39", "s37", 6)
    a.v_add_u32("v5", "s39", "v5")
    a.v_add_u32("v13", 7 * 32 * SW3, "v5")
    ACC = 128
    for i in range(16):
        a.v_mov_b32(vr(ACC + i), 0)
    a.s_waitcnt(mods="lgkmcnt(0)")
    a.s_barrier()
    AF, BF = 16, 72
    for t in range(14):
        for mb in range(2):
            a.ds_read_b128(vr(AF + 8 * (t % 4) + 4 * mb, 4), "v4", mods="offset:%d" % (64 * t + mb * 16 * SA))
        for nb in range(2):
            for h in range(2):
                a.ds_read_b64_tr_b16(vr(BF + 8 * (t % 4) + 4 * nb + 2 * h, 2), "v5" if t < 7 else "v13",
                                     mods="offset:%d" % ((32 * (t % 7) + 16 * h) * SW3 + 32 * nb))
        for mb in range(2):
            for nb in range(2):
                acc = vr(ACC + 4 * (2 * mb + nb), 4)
                a.v_mfma_f32_16x16x32_bf16(acc, vr(BF + 8 * (t % 4) + 4 * nb, 4), vr(AF + 8 * (t % 4) + 4 * mb, 4), acc)
    a.s_lshl_b32("s42", "s3", 6)
    a.s_lshl_b32("s43", "s36", 5)
    a.s_add_u32("s42", "s42", "s43")
    a.v_add_u32("v6", "s42", "v2")
    a.v_add_u32("v9", 16, "v6")
    a.s_lshl_b32("s43", "s2", 7)
    a.s_lshl_b32("s44", "s37", 6)
    a.s_add_u32("s43", "s43", "s44")
    a.v_mul_lo_u32("v7", "v6", "s31")
    a.v_lshl_add_u32("v7", "v3", 3, "v7")
    a.v_add_u32("v7", "s43", "v7")
    a.v_add_u32("v10", 16 * 896, "v7")
    a.v_lshlrev_b32("v8", 3, "v6")
    a.s_mov_b32("s45", WS_STATS)
    for mb in range(2):
        a.buffer_load_dwordx2(vr(16 + 2 * mb, 2), "v8", "s[12:15]", "s45", mods="offen offset:%d" % (128 * mb))
        for nb in range(2):
            a.buffer_load_dwordx2(vr(24 + 4 * mb + 2 * nb, 2), "v7" if mb == 0 else "v10", "s[20:23]", 0,
                                  mods="offen offset:%d" % (32 * nb))
    for mb in range(2):
        rowv = "v6" if mb == 0 else "v9"
        a.v_cmp_ne_u32("vcc", "s40", rowv)
        a.v_cmp_ne_u32("s[46:47]", "s41", rowv)
        a.s_and_b64("vcc", "vcc", "s[46:47]")
        a.s_and_saveexec_b64("s[48:49]", "vcc")
        for nb in range(2):
            acc = ACC + 4 * (2 * mb + nb)
            xr = 24 + 4 * mb + 2 * nb
            a.v_lshlrev_b32("v32", 16, vr(xr))
            a.v_and_b32("v33", "0xffff0000", vr(xr))
            a.v_lshlrev_b32("v34", 16, vr(xr + 1))
            a.v_and_b32("v35", "0xffff0000", vr(xr + 1))
            for r in range(4):
                final_combine(a, 36 + r, 32 + r, acc + r, 16 + 2 * mb, 17 + 2 * mb, 40)
            a.v_cvt_pk_bf16_f32("v42", "v36", "v37")
            a.v_cvt_pk_bf16_f32("v43", "v38", "v39")
            a.buffer_store_dwordx2("v[42:43]", "v7" if mb == 0 else "v10", "s[24:27]", 0, mods="offen offset:%d" % (32 * nb))
        a.s_mov_b64("exec", "s[48:49]")
    a.s_endpgm()
    a.label("k3_ffn")
    a.s_cmp_ge_u32("s3", 28)
    a.s_cbranch_scc1("k3_done")
    a.s_load_dwordx2("s[4:5]", "s[0:1]", 80)
    a.s_load_dwordx2("s[6:7]", "s[0:1]", 16)
    a.s_load_dwordx2("s[8:9]", "s[0:1]", 0)
    a.s_load_dwordx2("s[10:11]", "s[0:1]", 64)
    a.s_load_dwordx2("s[36:37]", "s[0:1]", 56)
    a.v_and_b32("v1", 1, "v0")
    a.v_lshrrev_b32("v2", 1, "v0")
    a.s_waitcnt(mods="lgkmcnt(0)")
    srd(a, 12, 4, WS_END)
    srd(a, 16, 6, WO_BYTES)
    srd(a, 20, 8, X_BYTES)
    srd(a, 24, 10, OUT_BYTES)
    srd(a, 28, 36, WG_BYTES)
    a.s_add_u32("s50", "s4", WS_SEL)
    a.s_addc_u32("s51", "s5", 0)
    a.s_load_dwordx4("s[40:43]", "s[50:51]", 0)
    a.v_mul_u32_u24("v3", 896, "v2")
    a.v_lshl_add_u32("v3", "v1", 4, "v3")
    a.s_lshl_b32("s33", "s3", 5)
    for it in range(14):
        a.s_add_u32("s34", "s33", it * 128 * 896)
        a.buffer_load_dwordx4(vr(112 + 4 * it, 4), "v3", "s[28:31]", "s34", mods="offen")
    for it in range(4):
        a.s_add_u32("s34", "s33", it * 128 * 896)
        a.buffer_load_dwordx4(vr(168 + 4 * it, 4), "v3", "s[16:19]", "s34", mods="offen")
    a.v_lshlrev_b32("v4", 1, "v2")
    a.s_mov_b32("s35", WS_H)
    a.s_add_u32("s38", "s35", 3584)
    for it in range(14):
        a.buffer_load_ushort(vr(32 + it), "v4", "s[12:15]", "s35", mods="offen offset:%d" % (256 * it))
        a.buffer_load_ushort(vr(46 + it), "v4", "s[12:15]", "s38", mods="offen offset:%d" % (256 * it))
    a.s_mul_i32("s44", "s40", 896)
    a.s_add_u32("s44", "s44", WS_O)
    a.s_mul_i32("s45", "s41", 896)
    a.s_add_u32("s45", "s45", WS_O)
    for it in range(4):
        a.buffer_load_ushort(vr(60 + it), "v4", "s[12:15]", "s44", mods="offen offset:%d" % (256 * it))
        a.buffer_load_ushort(vr(64 + it), "v4", "s[12:15]", "s45", mods="offen offset:%d" % (256 * it))
    ACC = 72
    for i in range(32):
        a.v_mov_b32(vr(ACC + i), 0)
    for i in list(range(32, 60)) + list(range(60, 68)):
        a.v_lshlrev_b32(vr(i), 16, vr(i))
    for (kind, nit, wbase, hb) in ((0, 14, 112, (32, 46)), (1, 4, 168, (60, 64))):
        for it in range(nit):
            for q in range(4):
                w = vr(wbase + 4 * it + q)
                a.v_lshlrev_b32("v4", 16, w)
                a.v_and_b32("v5", "0xffff0000", w)
                for tok in range(2):
                    hv = vr(hb[tok] + it)
                    a.v_fmac_f32(vr(ACC + 16 * kind + 8 * tok + 2 * q), hv, "v4")
                    a.v_fmac_f32(vr(ACC + 16 * kind + 8 * tok + 2 * q + 1), hv, "v5")
    a.v_lshlrev_b32("v4", 2, "v0")
    for i in range(32):
        a.ds_write_b32("v4", vr(ACC + i), mods="offset:%d" % (1024 * i))
    a.s_waitcnt(mods="lgkmcnt(0)")
    a.s_barrier()
    SUMS = 32768
    a.v_cmp_gt_u32("vcc", 64, "v0")
    a.s_and_saveexec_b64("s[46:47]", "vcc")
    a.s_cbranch_execz("k3_f2_skip1")
    a.v_lshrrev_b32("v5", 1, "v0")
    a.v_lshlrev_b32("v5", 10, "v5")
    a.v_lshl_add_u32("v5", "v1", 2, "v5")
    for kg in range(128):
        a.ds_read_b32(vr(112 + kg), "v5", mods="offset:%d" % (8 * kg))
    a.v_add_f32("v6", "v112", "v113")
    for kg in range(2, 128):
        a.v_add_f32("v6", "v6", vr(112 + kg))
    a.v_add_u32("v7", SUMS, "v4")
    a.ds_write_b32("v7", "v6")
    a.label("k3_f2_skip1")
    a.s_mov_b64("exec", "s[46:47]")
    a.s_waitcnt(mods="lgkmcnt(0)")
    a.s_barrier()
    a.v_cmp_gt_u32("vcc", 32, "v0")
    a.s_and_saveexec_b64("s[46:47]", "vcc")
    a.s_cbranch_execz("k3_done")
    a.v_add_u32("v7", SUMS, "v4")
    a.ds_read_b32("v8", "v7")
    a.ds_read_b32("v9", "v7", mods="offset:128")
    a.v_lshrrev_b32("v10", 4, "v0")
    a.v_bfe_u32("v11", "v0", 1, 3)
    a.v_lshl_add_u32("v11", "v1", 3, "v11")
    a.s_lshl_b32("s48", "s3", 4)
    a.v_add_u32("v11", "s48", "v11")
    a.v_cmp_eq_u32("vcc", 0, "v10")
    a.v_mov_b32("v12", "s41")
    a.v_mov_b32("v13", "s40")
    a.v_cndmask_b32("v12", "v12", "v13", "vcc")
    a.v_mov_b32("v13", "s43")
    a.v_mov_b32("v14", "s42")
    a.v_cndmask_b32("v13", "v13", "v14", "vcc")
    a.v_mul_u32_u24("v14", 896, "v12")
    a.v_lshl_add_u32("v14", "v11", 1, "v14")
    a.buffer_load_ushort("v15", "v14", "s[20:23]", 0, mods="offen")
    a.v_lshlrev_b32("v16", 3, "v12")
    a.s_mov_b32("s49", WS_STATS)
    a.buffer_load_dwordx2("v[18:19]", "v16", "s[12:15]", "s49", mods="offen")
    a.v_lshlrev_b32("v15", 16, "v15")
    rne_bf16_scalar(a, 8, 8)
    a.v_mul_f32("v8", "v8", "v13")
    rne_bf16_scalar(a, 8, 8)
    final_combine(a, 20, 15, 9, 18, 19, 21, 8)
    a.v_cvt_pk_bf16_f32("v20", "v20", "v20")
    a.buffer_store_short("v20", "v14", "s[24:27]", 0, mods="offen")
    a.label("k3_done")
    a.s_endpgm()
    return a, A_BASE + 64 * SA

KD = """.section .rodata,"a"
.p2align 6
.amdhsa_kernel {name}
  .amdhsa_next_free_vgpr {vgpr}
  .amdhsa_next_free_sgpr 96
  .amdhsa_accum_offset {acc}
  .amdhsa_group_segment_fixed_size 0
  .amdhsa_kernarg_size 88
  .amdhsa_user_sgpr_count 2
  .amdhsa_user_sgpr_kernarg_segment_ptr 1
  .amdhsa_system_sgpr_workgroup_id_x 1
{extra}.end_amdhsa_kernel
"""

HEADER = """; Kernarg layout (88 bytes): A_x, A_wqkv, A_wo, B_x, B_w_r, B_w_gate, B_w_up, B_w_down, d_out, d_debug, d_ws
"""


def build(kernels):
    out = [HEADER]
    for (name, a, lds, grid, block, vgpr, ydim) in kernels:
        out.append("; @launch kernel=%s grid=(%d,%d,%d) block=(%d,1,1) lds=%d\n" % (name, grid[0], grid[1], grid[2], block, lds))
    out.append('.amdgcn_target "amdgcn-amd-amdhsa--gfx950"\n')
    for (name, a, lds, grid, block, vgpr, ydim) in kernels:
        out.append(".text\n.globl %s\n.p2align 8\n.type %s,@function\n" % (name, name))
        out.append(a.finalize())
        out.append(KD.format(name=name, vgpr=vgpr, acc=(vgpr + 3) // 4 * 4,
                             extra="  .amdhsa_system_sgpr_workgroup_id_y 1\n" if ydim else ""))
    return "".join(out)


if __name__ == "__main__":
    k1, lds1 = gen_k1()
    k2, lds2 = gen_k2(True)
    k3, lds3 = gen_k3()
    ks = [("k1_kernel", k1, lds1, (7, 32, 1), 256, 216, True),
          ("k2_kernel", k2, lds2, (256 + NF1, 1, 1), 512, 208, False),
          ("k3_kernel", k3, lds3, (8, 32, 1), 256, 248, True)]
    open(sys.argv[1] if len(sys.argv) > 1 else "out.s", "w").write(build(ks))
```

```python
import sys, struct, math
from asmgen import Asm, vr, sr

S = 2048; D = 448; NQKV = 1344; F = 1792
WS_QKV = 0
WS_STATS = 0x540000
WS_R = 0x544000
WS_O = 0x548000
WS_H = 0x708000
WS_SEL = 0x70A000
WS_END = 0x70B000
X_BYTES = S * D * 2
WQKV_BYTES = D * NQKV * 2
WO_BYTES = D * D * 2
WG_BYTES = D * F * 2
OUT_BYTES = S * D * 2
SA = 912
NEG = "0xf149f2ca"
LOG2E = 1.4426950408889634
NF1 = 28
STAMPS = False


def f32hex(x):
    return "0x%08x" % struct.unpack("<I", struct.pack("<f", x))[0]


def stamp(a, i):
    if not STAMPS:
        return
    a.raw("    s_memtime s[60:61]")
    a.raw("    s_waitcnt lgkmcnt(0)")
    a.raw("    s_mov_b32 s%d, s60" % (64 + i))


def stamp_flush(a, n, wgreg, srdname, base, tag):
    if not STAMPS:
        return
    a.raw("    v_cmp_eq_u32 vcc, 0, v0")
    a.raw("    s_and_saveexec_b64 s[62:63], vcc")
    a.raw("    s_cbranch_execz stamp_skip_%s" % tag)
    a.raw("    s_lshl_b32 s58, %s, 6" % wgreg)
    a.raw("    s_add_u32 s58, s58, 0x%x" % base)
    for i in range(n):
        a.raw("    v_mov_b32 v100, s%d" % (64 + i))
        a.raw("    v_mov_b32 v101, %d" % (4 * i))
        a.raw("    buffer_store_dword v100, v101, %s, s58 offen" % srdname)
    a.raw("stamp_skip_%s:" % tag)
    a.raw("    s_mov_b64 exec, s[62:63]")


def srd(a, sb, sp, size):
    a.s_mov_b32(sr(sb), sr(sp))
    a.s_mov_b32(sr(sb + 1), sr(sp + 1))
    a.s_mov_b32(sr(sb + 2), "0x%x" % size)
    a.s_mov_b32(sr(sb + 3), "0x00020000")


def ws_srd(a, sb, sp):
    srd(a, sb, sp, WS_END + (0x100000 if STAMPS else 0))


def rne(a, vd, vs):
    a.v_cvt_pk_bf16_f32(vr(vd), vr(vs), vr(vs))
    a.v_lshlrev_b32(vr(vd), 16, vr(vd))


def xlane(a, op, v, vtmp, va16, va32):
    a.ds_bpermute_b32(vr(vtmp), vr(va16), vr(v))
    a.I(op, vr(v), vr(v), vr(vtmp))
    a.ds_bpermute_b32(vr(vtmp), vr(va32), vr(v))
    a.I(op, vr(v), vr(v), vr(vtmp))


def decode_7x32(a):
    a.s_and_b32("s3", "s2", 7)
    a.s_lshr_b32("s4", "s2", 3)
    a.s_mul_i32("s5", "s4", 37)
    a.s_lshr_b32("s5", "s5", 8)
    a.s_mul_i32("s6", "s5", 7)
    a.s_sub_u32("s2", "s4", "s6")
    a.s_lshl_b32("s3", "s3", 2)
    a.s_add_u32("s3", "s3", "s5")


def gen_k1():
    a = Asm()
    SW = 416
    WBUF = 64 * SW
    A_BASE = 2 * WBUF
    a.label("k1_kernel")
    a.s_cmp_ge_u32("s2", 224)
    a.s_cbranch_scc1("k1_done")
    a.s_load_dwordx4("s[36:39]", "s[0:1]", 0)
    a.s_load_dwordx2("s[8:9]", "s[0:1]", 32)
    a.s_load_dwordx2("s[10:11]", "s[0:1]", 80)
    decode_7x32(a)
    a.v_and_b32("v1", 63, "v0")
    a.v_and_b32("v2", 15, "v0")
    a.v_bfe_u32("v3", "v0", 4, 2)
    a.v_lshrrev_b32("v5", 6, "v0")
    a.v_readfirstlane_b32("s28", "v5")
    a.s_waitcnt(mods="lgkmcnt(0)")
    srd(a, 12, 36, X_BYTES)
    srd(a, 16, 38, WQKV_BYTES)
    ws_srd(a, 20, 10)
    srd(a, 24, 8, D * 2)
    stamp(a, 0)
    a.s_lshl_b32("s29", "s3", 6)
    a.s_lshl_b32("s30", "s28", 4)
    a.s_add_u32("s29", "s29", "s30")
    a.v_add_u32("v6", "s29", "v2")
    a.s_movk_i32("s31", 896)
    a.v_mul_lo_u32("v4", "v6", "s31")
    a.v_lshl_add_u32("v4", "v3", 4, "v4")
    for t in range(14):
        a.buffer_load_dwordx4(vr(16 + 4 * t, 4), "v4", "s[12:15]", 0, mods="offen offset:%d" % (64 * t))
    a.v_lshrrev_b32("v7", 3, "v0")
    a.v_and_b32("v8", 7, "v0")
    a.s_movk_i32("s32", 2688)
    a.v_mul_lo_u32("v9", "v7", "s32")
    a.v_lshl_add_u32("v9", "v8", 4, "v9")
    a.v_add_u32("v10", "0x15000", "v9")
    a.s_mul_i32("s33", "s2", 384)
    a.v_mul_u32_u24("v11", SW, "v7")
    a.v_lshl_add_u32("v11", "v8", 4, "v11")
    WR = (184, 208)

    def w_loads(ch):
        base = WR[ch % 2]
        a.s_add_u32("s34", "s33", ch * 64 * 2688)
        for i in range(2):
            for j in range(3):
                a.buffer_load_dwordx4(vr(base + 4 * (3 * i + j), 4), "v9" if i == 0 else "v10", "s[16:19]", "s34",
                                      mods="offen offset:%d" % (128 * j))

    def w_writes(ch):
        base = WR[ch % 2]
        for i in range(2):
            for j in range(3):
                a.ds_write_b128("v11", vr(base + 4 * (3 * i + j), 4),
                                mods="offset:%d" % ((ch % 2) * WBUF + 32 * i * SW + 128 * j))

    w_loads(0)
    w_loads(1)
    a.v_xor_b32("v12", 16, "v1")
    a.v_lshlrev_b32("v12", 2, "v12")
    a.v_xor_b32("v13", 32, "v1")
    a.v_lshlrev_b32("v13", 2, "v13")
    if STAMPS:
        a.s_waitcnt(mods="vmcnt(12)")
    stamp(a, 1)
    for i in range(56):
        a.v_lshlrev_b32(vr(72 + 2 * i), 16, vr(16 + i))
        a.v_and_b32(vr(73 + 2 * i), "0xffff0000", vr(16 + i))
    a.v_pk_add_f32("v[14:15]", "v[72:73]", "v[74:75]")
    for i in range(2, 56):
        a.v_pk_add_f32("v[14:15]", "v[14:15]", vr(72 + 2 * i, 2))
    a.v_add_f32("v14", "v14", "v15")
    xlane(a, "v_add_f32", 14, 15, 12, 13)
    a.v_mul_f32("v14", "0x3b124925", "v14")
    a.v_sub_f32("v232", 0, "v14")
    a.v_mov_b32("v233", "v232")
    a.v_mov_b32("v234", 0)
    a.v_mov_b32("v235", 0)
    for i in range(56):
        a.v_pk_add_f32("v[236:237]", vr(72 + 2 * i, 2), "v[232:233]")
        a.v_pk_fma_f32("v[234:235]", "v[236:237]", "v[236:237]", "v[234:235]")
    a.v_add_f32("v234", "v234", "v235")
    xlane(a, "v_add_f32", 234, 15, 12, 13)
    a.v_mul_f32("v234", "0x3b124925", "v234")
    rne(a, 14, 14)
    rne(a, 234, 234)
    a.v_add_f32("v234", "0x3727c5ac", "v234")
    rne(a, 234, 234)
    a.v_sqrt_f32("v234", "v234")
    rne(a, 234, 234)
    a.v_rcp_f32("v234", "v234")
    a.v_mov_b32("v235", "v234")
    a.v_sub_f32("v232", 0, "v14")
    a.v_mov_b32("v233", "v232")
    for i in range(56):
        p = vr(72 + 2 * i, 2)
        a.v_pk_add_f32(p, p, "v[232:233]")
        a.v_cvt_pk_bf16_f32(vr(16 + i), vr(72 + 2 * i), vr(73 + 2 * i))
        a.v_lshlrev_b32(vr(72 + 2 * i), 16, vr(16 + i))
        a.v_and_b32(vr(73 + 2 * i), "0xffff0000", vr(16 + i))
        a.v_pk_mul_f32(p, p, "v[234:235]")
        a.v_cvt_pk_bf16_f32(vr(16 + i), vr(72 + 2 * i), vr(73 + 2 * i))
    stamp(a, 2)
    a.v_mul_u32_u24("v15", SA, "v2")
    a.s_mul_i32("s35", "s28", 16 * SA)
    a.s_add_u32("s35", "s35", A_BASE)
    a.v_add_u32("v15", "s35", "v15")
    a.v_and_b32("v236", 1, "v3")
    a.v_lshl_add_u32("v15", "v236", 5, "v15")
    a.v_lshrrev_b32("v236", 1, "v3")
    a.v_lshl_add_u32("v15", "v236", 3, "v15")
    for t in range(14):
        a.ds_write2_b64("v15", vr(16 + 4 * t, 2), vr(18 + 4 * t, 2), mods="offset0:%d offset1:%d" % (8 * t, 8 * t + 2))
    w_writes(0)
    w_loads(2)
    a.s_cmp_lg_u32("s2", 0)
    a.s_cbranch_scc1("k1_skip_r")
    a.v_lshlrev_b32("v236", 4, "v3")
    for t in range(14):
        a.buffer_load_dwordx4(vr(120 + 4 * t, 4), "v236", "s[24:27]", 0, mods="offen offset:%d" % (64 * t))
    a.v_mov_b32("v237", 0)
    for i in range(56):
        a.v_dot2_f32_bf16("v237", vr(16 + i), vr(120 + i), "v237")
    xlane(a, "v_add_f32", 237, 238, 12, 13)
    rne(a, 237, 237)
    a.v_cmp_gt_u32("vcc", 16, "v1")
    a.s_and_saveexec_b64("s[40:41]", "vcc")
    a.v_lshlrev_b32("v238", 2, "v6")
    a.v_add_u32("v238", "0x%x" % WS_R, "v238")
    a.buffer_store_dword("v237", "v238", "s[20:23]", 0, mods="offen")
    a.v_lshlrev_b32("v238", 3, "v6")
    a.v_add_u32("v238", "0x%x" % WS_STATS, "v238")
    a.v_mov_b32("v236", "v14")
    a.v_mov_b32("v237", "v234")
    a.buffer_store_dwordx2("v[236:237]", "v238", "s[20:23]", 0, mods="offen")
    a.s_mov_b64("exec", "s[40:41]")
    a.label("k1_skip_r")
    a.v_mul_u32_u24("v4", SA, "v2")
    a.v_lshl_add_u32("v4", "v3", 4, "v4")
    a.v_add_u32("v4", A_BASE, "v4")
    a.v_bfe_u32("v5", "v0", 2, 4)
    a.v_mul_u32_u24("v5", SW, "v5")
    a.v_and_b32("v7", 3, "v0")
    a.v_lshl_add_u32("v5", "v7", 3, "v5")
    a.s_mul_i32("s35", "s28", 96)
    a.v_add_u32("v5", "s35", "v5")
    ACC = 72
    for i in range(48):
        a.v_mov_b32(vr(ACC + i), 0)
    a.s_waitcnt(mods="lgkmcnt(0)")
    stamp(a, 3)
    a.s_barrier()
    stamp(a, 4)
    AF, BF = 120, 152

    def frag_reads(step):
        ch, tl = step // 2, step % 2
        st = step % 2
        for mb in range(4):
            a.ds_read_b128(vr(AF + 16 * st + 4 * mb, 4), "v4", mods="offset:%d" % (64 * step + mb * 16 * SA))
        for nb in range(3):
            for h in range(2):
                a.ds_read_b64_tr_b16(vr(BF + 12 * st + 4 * nb + 2 * h, 2), "v5",
                                     mods="offset:%d" % ((ch % 2) * WBUF + (32 * tl + 16 * h) * SW + 32 * nb))

    def mfmas(step):
        st = step % 2
        for mb in range(4):
            for nb in range(3):
                acc = vr(ACC + 4 * (3 * mb + nb), 4)
                a.v_mfma_f32_16x16x32_bf16(acc, vr(BF + 12 * st + 4 * nb, 4), vr(AF + 16 * st + 4 * mb, 4), acc)

    for ch in range(7):
        frag_reads(2 * ch)
        frag_reads(2 * ch + 1)
        mfmas(2 * ch)
        if ch + 1 < 7:
            w_writes(ch + 1)
            if ch + 3 < 7:
                w_loads(ch + 3)
        mfmas(2 * ch + 1)
        if ch + 1 < 7:
            a.s_waitcnt(mods="lgkmcnt(0)")
            a.s_barrier()
    stamp(a, 5)
    a.s_mul_i32("s35", "s2", 192)
    a.s_mul_i32("s36", "s28", 48)
    a.s_add_u32("s35", "s35", "s36")
    a.v_lshlrev_b32("v5", 2, "v3")
    a.v_add_u32("v5", "s35", "v5")
    a.s_lshl_b32("s36", "s3", 6)
    a.v_add_u32("v7", "s36", "v2")
    a.v_mul_u32_u24("v7", 56, "v7")
    a.s_mov_b32("s37", 9363)
    a.s_mov_b32("s38", 114632)
    for nb in range(3):
        a.v_add_u32("v8", 16 * nb, "v5")
        a.v_mul_lo_u32("v9", "v8", "s37")
        a.v_lshrrev_b32("v9", 18, "v9")
        a.v_mul_lo_u32("v9", "v9", "s38")
        a.v_lshl_add_u32("v9", "v8", 1, "v9")
        a.v_add_u32(vr(10 + nb), "v9", "v7")
    for mb in range(4):
        for nb in range(3):
            acc = ACC + 4 * (3 * mb + nb)
            a.v_cvt_pk_bf16_f32(vr(acc), vr(acc), vr(acc + 1))
            a.v_cvt_pk_bf16_f32(vr(acc + 1), vr(acc + 2), vr(acc + 3))
            a.buffer_store_dwordx2(vr(acc, 2), vr(10 + nb), "s[20:23]", 0, mods="offen offset:%d" % (896 * mb))
    stamp(a, 6)
    if STAMPS:
        a.raw("    s_mul_i32 s57, s3, 7")
        a.raw("    s_add_u32 s57, s57, s2")
    stamp_flush(a, 7, "s57", "s[20:23]", 0x780000, "k1")
    a.label("k1_done")
    a.s_endpgm()
    return a, A_BASE + 64 * SA, 240


def gen_k2():
    a = Asm()
    HS = 114688
    VB = 24576
    a.label("k2_kernel")
    a.s_cmp_ge_u32("s2", 256)
    a.s_cbranch_scc1("k2_ffn")
    a.s_load_dwordx2("s[4:5]", "s[0:1]", 80)
    a.v_and_b32("v1", 63, "v0")
    a.v_and_b32("v2", 15, "v0")
    a.v_bfe_u32("v3", "v0", 4, 2)
    a.v_lshrrev_b32("v5", 6, "v0")
    a.v_readfirstlane_b32("s28", "v5")
    a.s_and_b32("s29", "s2", 7)
    a.s_lshl_b32("s29", "s29", 1)
    a.s_lshr_b32("s30", "s2", 3)
    a.s_lshr_b32("s31", "s30", 4)
    a.s_add_u32("s29", "s29", "s31")
    a.s_and_b32("s30", "s30", 15)
    a.s_waitcnt(mods="lgkmcnt(0)")
    ws_srd(a, 8, 4)
    stamp(a, 0)
    a.s_mul_i32("s31", "s29", HS)
    a.s_mul_i32("s32", "s30", 128 * 56)
    a.s_add_u32("s31", "s31", "s32")
    a.s_add_u32("s33", "s31", 16 * HS - 256 * 56)
    a.s_add_u32("s34", "s33", 16 * HS)
    a.v_lshlrev_b32("v4", 4, "v0")
    a.v_add_u32("v5", 8192, "v4")
    a.v_add_u32("v6", 16384, "v4")
    SR = 36
    for i, vo in enumerate(("v4", "v5", "v6")):
        a.buffer_load_dwordx4(vr(SR + 4 * i, 4), vo, "s[8:11]", "s33", mods="offen")
    for i, vo in enumerate(("v4", "v5", "v6")):
        a.buffer_load_dwordx4(vr(SR + 12 + 4 * i, 4), vo, "s[8:11]", "s34", mods="offen")
    a.s_lshl_b32("s35", "s28", 4)
    a.v_add_u32("v7", "s35", "v2")
    a.v_mul_u32_u24("v7", 56, "v7")
    a.v_lshl_add_u32("v7", "v3", 4, "v7")
    QF = 16
    a.buffer_load_dwordx2(vr(QF, 2), "v7", "s[8:11]", "s31", mods="offen")
    a.buffer_load_dwordx2(vr(QF + 2, 2), "v7", "s[8:11]", "s31", mods="offen offset:8")
    a.s_lshl_b32("s36", "s30", 3)
    a.s_add_u32("s36", "s36", "s28")
    a.s_sub_i32("s36", 16, "s36")
    a.s_max_i32("s36", "s36", 0)
    a.s_mov_b32("s37", NEG)
    a.v_lshlrev_b32("v8", 2, "v3")
    a.v_sub_u32("v8", "v8", "v2")
    a.s_cmp_gt_i32("s36", 0)
    a.s_cselect_b32("s38", -1000, 0)
    a.v_add_u32("v9", "s38", "v8")
    a.v_mov_b32("v10", "s37")
    for r in range(4):
        a.v_cmp_lt_i32("vcc", -r, "v9")
        a.v_cndmask_b32(vr(20 + r), "v10", 0, "vcc")
    for r in range(4):
        a.v_cmp_ge_i32("vcc", -r, "v8")
        a.v_cndmask_b32(vr(24 + r), "v10", 0, "vcc")
    a.v_cmp_eq_u32("vcc", 3, "v3")
    a.v_cndmask_b32(vr(QF + 2), vr(QF + 2), 0, "vcc")
    a.v_cndmask_b32(vr(QF + 3), vr(QF + 3), 0, "vcc")
    for i in range(3):
        a.ds_write_b128("v4", vr(SR + 4 * i, 4), mods="offset:%d" % (8192 * i))
    for i in range(3):
        a.ds_write_b128("v4", vr(SR + 12 + 4 * i, 4), mods="offset:%d" % (VB + 8192 * i))
    a.s_waitcnt(mods="lgkmcnt(0)")
    stamp(a, 1)
    a.s_barrier()
    stamp(a, 2)
    KF = 104
    def kread(b):
        a.ds_read_b64(vr(KF + 4 * (b % 6), 2), "v7", mods="offset:%d" % (896 * b))
        a.ds_read_b64(vr(KF + 4 * (b % 6) + 2, 2), "v7", mods="offset:%d" % (896 * b + 8))
    for b in range(6):
        kread(b)
    for b in range(17):
        if b == 0:
            cop = "v[20:23]"
        elif b == 16:
            cop = "v[24:27]"
        else:
            a.s_cmp_gt_i32("s36", b)
            a.s_cselect_b32("s38", "s37", 0)
            for r in range(4):
                a.v_mov_b32(vr(28 + 4 * (b % 2) + r), "s38")
            cop = vr(28 + 4 * (b % 2), 4)
        a.v_mfma_f32_16x16x32_bf16(vr(SR + 4 * b, 4), vr(KF + 4 * (b % 6), 4), vr(QF, 4), cop)
        if b + 6 < 17:
            kread(b + 6)
    if STAMPS:
        a.v_mov_b32("v12", vr(SR + 64))
    stamp(a, 3)
    a.v_bfe_u32("v11", "v0", 2, 4)
    a.v_add_u32("v11", "s35", "v11")
    a.v_mul_u32_u24("v11", 56, "v11")
    a.v_and_b32("v12", 3, "v0")
    a.v_lshl_add_u32("v11", "v12", 3, "v11")
    a.v_add_u32("v11", VB, "v11")
    a.v_max3_f32("v12", vr(SR), vr(SR + 1), vr(SR + 2))
    i = 3
    while i + 1 < 68:
        a.v_max3_f32("v12", "v12", vr(SR + i), vr(SR + i + 1))
        i += 2
    if i < 68:
        a.v_max_f32("v12", "v12", vr(SR + i))
    a.v_xor_b32("v13", 16, "v1")
    a.v_lshlrev_b32("v13", 2, "v13")
    a.v_xor_b32("v14", 32, "v1")
    a.v_lshlrev_b32("v14", 2, "v14")
    xlane(a, "v_max_f32", 12, 15, 13, 14)
    c1 = (28 ** -0.5) * LOG2E
    a.s_mov_b32("s39", f32hex(c1))
    a.v_mul_f32("v12", "s39", "v12")
    for i in range(68):
        a.v_fma_f32(vr(SR + i), vr(SR + i), "s39", "-v12")
    for i in range(68):
        a.v_exp_f32(vr(SR + i), vr(SR + i))
    a.v_pk_add_f32("v[8:9]", vr(SR, 2), vr(SR + 2, 2))
    for i in range(2, 34):
        a.v_pk_add_f32("v[8:9]", "v[8:9]", vr(SR + 2 * i, 2))
    a.v_add_f32("v8", "v8", "v9")
    for i in range(34):
        a.v_cvt_pk_bf16_f32(vr(SR + i), vr(SR + 2 * i), vr(SR + 2 * i + 1))
    PK = SR
    VF = 70
    xlane(a, "v_add_f32", 8, 15, 13, 14)
    a.v_rcp_f32("v8", "v8")
    OA = 28
    for db in range(2):
        for j in range(8):
            for h in range(2):
                a.ds_read_b64_tr_b16(vr(VF + 4 * j + 2 * h, 2), "v11", mods="offset:%d" % ((32 * j + 16 * h) * 56 + 32 * db))
        a.ds_read_b64_tr_b16(vr(VF + 32, 2), "v11", mods="offset:%d" % (256 * 56 + 32 * db))
        for j in range(8):
            a.v_mfma_f32_16x16x32_bf16(vr(OA + 4 * db, 4), vr(VF + 4 * j, 4), vr(PK + 4 * j, 4),
                                       vr(OA + 4 * db, 4) if j > 0 else 0)
        a.v_mfma_f32_16x16x16_bf16(vr(OA + 4 * db, 4), vr(VF + 32, 2), vr(PK + 32, 2), vr(OA + 4 * db, 4))
    stamp(a, 4)
    a.s_lshl_b32("s40", "s30", 7)
    a.s_add_u32("s40", "s40", "s35")
    a.v_add_u32("v4", "s40", "v2")
    a.s_movk_i32("s41", 896)
    a.v_mul_lo_u32("v4", "v4", "s41")
    a.v_lshl_add_u32("v4", "v3", 3, "v4")
    a.s_mul_i32("s42", "s29", 56)
    a.s_add_u32("s42", "s42", WS_O)
    for i in range(8):
        a.v_mul_f32(vr(OA + i), vr(OA + i), "v8")
    a.v_cvt_pk_bf16_f32("v12", vr(OA), vr(OA + 1))
    a.v_cvt_pk_bf16_f32("v13", vr(OA + 2), vr(OA + 3))
    a.v_cvt_pk_bf16_f32("v14", vr(OA + 4), vr(OA + 5))
    a.v_cvt_pk_bf16_f32("v15", vr(OA + 6), vr(OA + 7))
    a.buffer_store_dwordx2("v[12:13]", "v4", "s[8:11]", "s42", mods="offen")
    a.v_cmp_gt_u32("vcc", 48, "v1")
    a.s_and_saveexec_b64("s[44:45]", "vcc")
    a.buffer_store_dwordx2("v[14:15]", "v4", "s[8:11]", "s42", mods="offen offset:32")
    a.s_mov_b64("exec", "s[44:45]")
    stamp(a, 5)
    stamp_flush(a, 6, "s2", "s[8:11]", 0x790000, "k2")
    a.s_endpgm()
    a.label("k2_ffn")
    gen_ffn1(a)
    a.s_endpgm()
    return a, 65536 + 4096, 128


def sigmoid_bf16(a, vd, vx, vt):
    a.v_mul_f32(vr(vt), f32hex(-LOG2E), vr(vx))
    a.v_exp_f32(vr(vt), vr(vt))
    a.v_add_f32(vr(vt), 1.0, vr(vt))
    a.v_rcp_f32(vr(vt), vr(vt))
    rne(a, vd, vt)


def gen_ffn1(a):
    TOP = 65536
    SUMS = 65536 + 64
    a.s_sub_u32("s29", "s2", 256)
    a.s_cmp_ge_u32("s29", NF1)
    a.s_cbranch_scc1("k2_done")
    a.s_load_dwordx2("s[4:5]", "s[0:1]", 80)
    a.s_load_dwordx2("s[6:7]", "s[0:1]", 0)
    a.s_load_dwordx4("s[12:15]", "s[0:1]", 40)
    a.v_lshlrev_b32("v4", 4, "v0")
    a.v_mov_b32("v5", TOP)
    a.v_mov_b32("v6", 0)
    a.v_mov_b32("v7", 0)
    a.ds_write_b64("v5", "v[6:7]")
    a.s_waitcnt(mods="lgkmcnt(0)")
    ws_srd(a, 8, 4)
    srd(a, 16, 6, X_BYTES)
    srd(a, 20, 12, WG_BYTES)
    srd(a, 24, 14, WG_BYTES)
    a.s_mov_b32("s30", WS_R)
    a.buffer_load_dwordx4("v[16:19]", "v4", "s[8:11]", "s30", mods="offen")
    a.v_lshrrev_b32("v8", 3, "v0")
    a.s_movk_i32("s33", 3584)
    a.v_mul_lo_u32("v9", "v8", "s33")
    a.v_and_b32("v10", 7, "v0")
    a.v_lshl_add_u32("v9", "v10", 4, "v9")
    a.s_lshl_b32("s34", "s29", 7)
    WB = 64
    for it in range(7):
        a.s_add_u32("s35", "s34", it * 64 * 3584)
        a.buffer_load_dwordx4(vr(WB + 8 * it, 4), "v9", "s[20:23]", "s35", mods="offen")
        a.buffer_load_dwordx4(vr(WB + 4 + 8 * it, 4), "v9", "s[24:27]", "s35", mods="offen")
    a.s_barrier()
    a.v_lshlrev_b32("v11", 2, "v0")
    for e in range(4):
        a.v_ashrrev_i32("v9", 31, vr(16 + e))
        a.v_or_b32("v9", "0x80000000", "v9")
        a.v_xor_b32("v9", "v9", vr(16 + e))
        a.v_and_b32("v9", "0xffff0000", "v9")
        a.v_sub_u32("v12", 0xFFFF - e, "v11")
        a.v_or_b32(vr(20 + e), "v9", "v12")
    a.v_max_u32("v14", "v20", "v21")
    a.v_min_u32("v15", "v20", "v21")
    for e in (22, 23):
        a.v_min_u32("v12", "v14", vr(e))
        a.v_max_u32("v14", "v14", vr(e))
        a.v_max_u32("v15", "v15", "v12")
    a.ds_max_u32("v5", "v14")
    a.s_waitcnt(mods="lgkmcnt(0)")
    a.s_barrier()
    a.ds_read_b32("v12", "v5")
    a.v_cmp_eq_u32("vcc", "v14", "v12")
    a.v_cndmask_b32("v13", "v14", "v15", "vcc")
    a.ds_max_u32("v5", "v13", mods="offset:4")
    a.s_waitcnt(mods="lgkmcnt(0)")
    a.s_barrier()
    a.ds_read_b32("v13", "v5", mods="offset:4")
    a.v_and_b32("v12", "0xffff", "v12")
    a.v_sub_u32("v12", "0xffff", "v12")
    a.v_and_b32("v13", "0xffff", "v13")
    a.v_sub_u32("v13", "0xffff", "v13")
    a.s_mov_b32("s31", WS_STATS)
    a.v_lshlrev_b32("v14", 3, "v12")
    a.v_lshlrev_b32("v15", 3, "v13")
    a.buffer_load_dwordx2("v[24:25]", "v14", "s[8:11]", "s31", mods="offen")
    a.buffer_load_dwordx2("v[26:27]", "v15", "s[8:11]", "s31", mods="offen")
    a.v_lshlrev_b32("v14", 2, "v12")
    a.v_lshlrev_b32("v15", 2, "v13")
    a.buffer_load_dword("v28", "v14", "s[8:11]", "s30", mods="offen")
    a.buffer_load_dword("v29", "v15", "s[8:11]", "s30", mods="offen")
    a.s_movk_i32("s32", 896)
    a.v_mul_lo_u32("v14", "v12", "s32")
    a.v_lshl_add_u32("v14", "v8", 1, "v14")
    a.v_mul_lo_u32("v15", "v13", "s32")
    a.v_lshl_add_u32("v15", "v8", 1, "v15")
    for it in range(7):
        a.buffer_load_ushort(vr(16 + it), "v14", "s[16:19]", 0, mods="offen offset:%d" % (128 * it))
        a.buffer_load_ushort(vr(56 + it), "v15", "s[16:19]", 0, mods="offen offset:%d" % (128 * it))
    for it in range(7):
        for (base, m, rs) in ((16, 24, 25), (56, 26, 27)):
            x = vr(base + it)
            a.v_lshlrev_b32(x, 16, x)
            a.v_sub_f32(x, x, vr(m))
            a.v_cvt_pk_bf16_f32(x, x, x)
            a.v_lshlrev_b32(x, 16, x)
            a.v_mul_f32(x, x, vr(rs))
            a.v_cvt_pk_bf16_f32(x, x, x)
            a.v_lshlrev_b32(x, 16, x)
    accs = list(range(30, 56)) + list(range(4, 8)) + [9, 11]
    assert len(accs) == 32
    for r in accs:
        a.v_mov_b32(vr(r), 0)
    for it in range(7):
        for mat in range(2):
            for q in range(4):
                w = vr(WB + 8 * it + 4 * mat + q)
                a.v_lshlrev_b32("v23", 16, w)
                a.v_and_b32("v63", "0xffff0000", w)
                for tok in range(2):
                    xv = vr((16, 56)[tok] + it)
                    a.v_fmac_f32(vr(accs[16 * mat + 8 * tok + 2 * q]), xv, "v23")
                    a.v_fmac_f32(vr(accs[16 * mat + 8 * tok + 2 * q + 1]), xv, "v63")
    a.v_lshlrev_b32("v14", 2, "v0")
    for i in range(32):
        a.ds_write_b32("v14", vr(accs[i]), mods="offset:%d" % (2048 * i))
    a.s_waitcnt(mods="lgkmcnt(0)")
    a.s_barrier()
    a.v_and_b32("v15", 255, "v0")
    a.v_lshrrev_b32("v16", 3, "v15")
    a.v_lshlrev_b32("v16", 11, "v16")
    a.v_lshl_add_u32("v16", "v10", 2, "v16")
    a.v_lshrrev_b32("v17", 8, "v0")
    a.v_lshl_add_u32("v16", "v17", 10, "v16")
    for kg in range(32):
        a.ds_read_b32(vr(WB + kg), "v16", mods="offset:%d" % (32 * kg))
    a.v_add_f32("v18", vr(WB), vr(WB + 1))
    for kg in range(2, 32):
        a.v_add_f32("v18", "v18", vr(WB + kg))
    a.v_add_u32("v19", SUMS, "v14")
    a.ds_write_b32("v19", "v18")
    a.s_waitcnt(mods="lgkmcnt(0)")
    a.s_barrier()
    a.v_cmp_gt_u32("vcc", 128, "v0")
    a.s_and_saveexec_b64("s[36:37]", "vcc")
    a.s_cbranch_execz("k2_f1_skip2")
    a.ds_read_b32("v18", "v19")
    a.ds_read_b32("v20", "v19", mods="offset:512")
    a.ds_read_b32("v21", "v19", mods="offset:1024")
    a.ds_read_b32("v22", "v19", mods="offset:1536")
    a.v_add_f32("v18", "v18", "v21")
    a.v_add_f32("v20", "v20", "v22")
    rne(a, 18, 18)
    rne(a, 20, 20)
    a.v_mul_f32("v21", f32hex(-LOG2E), "v18")
    a.v_exp_f32("v21", "v21")
    a.v_add_f32("v21", 1.0, "v21")
    a.v_rcp_f32("v21", "v21")
    a.v_mul_f32("v21", "v21", "v18")
    rne(a, 21, 21)
    a.v_mul_f32("v21", "v21", "v20")
    a.v_cvt_pk_bf16_f32("v21", "v21", "v21")
    a.v_lshrrev_b32("v16", 6, "v0")
    a.v_mul_u32_u24("v16", 1792, "v16")
    a.v_lshl_add_u32("v16", "v10", 3, "v16")
    a.v_bfe_u32("v17", "v0", 3, 3)
    a.v_add_u32("v16", "v16", "v17")
    a.s_lshl_b32("s38", "s29", 6)
    a.v_add_u32("v16", "s38", "v16")
    a.v_lshlrev_b32("v16", 1, "v16")
    a.s_mov_b32("s39", WS_H)
    a.buffer_store_short("v21", "v16", "s[8:11]", "s39", mods="offen")
    a.label("k2_f1_skip2")
    a.s_mov_b64("exec", "s[36:37]")
    a.s_cmp_lg_u32("s29", 0)
    a.s_cbranch_scc1("k2_done")
    sigmoid_bf16(a, 28, 28, 16)
    sigmoid_bf16(a, 29, 29, 16)
    a.v_mov_b32("v16", "v12")
    a.v_mov_b32("v17", "v13")
    a.v_mov_b32("v18", "v28")
    a.v_mov_b32("v19", "v29")
    a.v_mov_b32("v20", WS_SEL)
    a.v_cmp_eq_u32("vcc", 0, "v0")
    a.s_and_saveexec_b64("s[36:37]", "vcc")
    a.buffer_store_dwordx4("v[16:19]", "v20", "s[8:11]", 0, mods="offen")
    a.label("k2_done")


def final_combine(a, vout, vx, vattn, vm, vrs, vt, vy2=None):
    rne(a, vattn, vattn)
    a.v_add_f32(vr(vattn), vr(vx), vr(vattn))
    rne(a, vattn, vattn)
    a.v_sub_f32(vr(vt), vr(vx), vr(vm))
    rne(a, vt, vt)
    a.v_mul_f32(vr(vt), vr(vt), vr(vrs))
    rne(a, vt, vt)
    if vy2 is not None:
        a.v_add_f32(vr(vt), vr(vt), vr(vy2))
        rne(a, vt, vt)
    a.v_add_f32(vr(vout), vr(vattn), vr(vt))


def gen_k3():
    a = Asm()
    SW3 = 160
    a.label("k3_kernel")
    a.s_cmp_ge_u32("s2", 224)
    a.s_cbranch_scc1("k3_ffn")
    a.s_load_dwordx2("s[36:37]", "s[0:1]", 80)
    a.s_load_dwordx2("s[38:39]", "s[0:1]", 16)
    a.s_load_dwordx2("s[8:9]", "s[0:1]", 0)
    a.s_load_dwordx2("s[10:11]", "s[0:1]", 64)
    decode_7x32(a)
    a.v_and_b32("v1", 63, "v0")
    a.v_and_b32("v2", 15, "v0")
    a.v_bfe_u32("v3", "v0", 4, 2)
    a.v_lshrrev_b32("v5", 6, "v0")
    a.v_readfirstlane_b32("s28", "v5")
    a.s_waitcnt(mods="lgkmcnt(0)")
    ws_srd(a, 12, 36)
    srd(a, 16, 38, WO_BYTES)
    srd(a, 20, 8, X_BYTES)
    srd(a, 24, 10, OUT_BYTES)
    a.s_add_u32("s50", "s36", WS_SEL)
    a.s_addc_u32("s51", "s37", 0)
    a.s_load_dwordx2("s[40:41]", "s[50:51]", 0)
    stamp(a, 0)
    a.v_lshrrev_b32("v7", 3, "v0")
    a.v_and_b32("v8", 7, "v0")
    a.v_mul_u32_u24("v9", 896, "v7")
    a.v_lshl_add_u32("v9", "v8", 4, "v9")
    a.s_lshl_b32("s33", "s2", 7)
    for i in range(14):
        a.s_add_u32("s34", "s33", 28672 * i)
        a.buffer_load_dwordx4(vr(72 + 4 * i, 4), "v9", "s[16:19]", "s34", mods="offen")
    a.s_lshl_b32("s29", "s3", 6)
    a.s_lshl_b32("s30", "s28", 4)
    a.s_add_u32("s29", "s29", "s30")
    a.v_add_u32("v6", "s29", "v2")
    a.s_movk_i32("s31", 896)
    a.v_mul_lo_u32("v4", "v6", "s31")
    a.v_lshl_add_u32("v4", "v3", 3, "v4")
    a.s_mov_b32("s32", WS_O)
    for t in range(14):
        a.buffer_load_dwordx2(vr(16 + 4 * t, 2), "v4", "s[12:15]", "s32", mods="offen offset:%d" % (64 * t))
        a.buffer_load_dwordx2(vr(18 + 4 * t, 2), "v4", "s[12:15]", "s32", mods="offen offset:%d" % (64 * t + 32))
    a.s_lshl_b32("s43", "s2", 7)
    a.v_add_u32("v10", "s43", "v4")
    for nb in range(4):
        a.buffer_load_dwordx2(vr(160 + 2 * nb, 2), "v10", "s[20:23]", 0, mods="offen offset:%d" % (32 * nb))
    a.v_lshlrev_b32("v11", 3, "v6")
    a.s_mov_b32("s45", WS_STATS)
    a.buffer_load_dwordx2("v[168:169]", "v11", "s[12:15]", "s45", mods="offen")
    a.v_mul_u32_u24("v11", SW3, "v7")
    a.v_lshl_add_u32("v11", "v8", 4, "v11")
    a.v_add_u32("v12", 7 * 32 * SW3, "v11")
    for i in range(14):
        a.ds_write_b128("v11" if i < 7 else "v12", vr(72 + 4 * i, 4), mods="offset:%d" % (32 * SW3 * (i % 7)))
    a.v_bfe_u32("v5", "v0", 2, 4)
    a.v_mul_u32_u24("v5", SW3, "v5")
    a.v_and_b32("v7", 3, "v0")
    a.v_lshl_add_u32("v5", "v7", 3, "v5")
    a.v_add_u32("v13", 7 * 32 * SW3, "v5")
    ACC = 136
    for i in range(16):
        a.v_mov_b32(vr(ACC + i), 0)
    a.s_waitcnt(mods="lgkmcnt(0)")
    stamp(a, 1)
    a.s_barrier()
    stamp(a, 2)
    BF = 72
    def breads(t):
        for nb in range(4):
            for h in range(2):
                a.ds_read_b64_tr_b16(vr(BF + 16 * (t % 4) + 4 * nb + 2 * h, 2), "v5" if t < 7 else "v13",
                                     mods="offset:%d" % ((32 * (t % 7) + 16 * h) * SW3 + 32 * nb))
    breads(0); breads(1); breads(2)
    for t in range(14):
        if t + 3 < 14:
            breads(t + 3)
        for nb in range(4):
            acc = vr(ACC + 4 * nb, 4)
            a.v_mfma_f32_16x16x32_bf16(acc, vr(BF + 16 * (t % 4) + 4 * nb, 4), vr(16 + 4 * t, 4), acc)
    stamp(a, 3)
    a.v_cmp_ne_u32("vcc", "s40", "v6")
    a.v_cmp_ne_u32("s[46:47]", "s41", "v6")
    a.s_and_b64("vcc", "vcc", "s[46:47]")
    a.s_and_saveexec_b64("s[48:49]", "vcc")
    for nb in range(4):
        acc = ACC + 4 * nb
        xr = 160 + 2 * nb
        a.v_lshlrev_b32("v172", 16, vr(xr))
        a.v_and_b32("v173", "0xffff0000", vr(xr))
        a.v_lshlrev_b32("v174", 16, vr(xr + 1))
        a.v_and_b32("v175", "0xffff0000", vr(xr + 1))
        for r in range(4):
            final_combine(a, 176 + r, 172 + r, acc + r, 168, 169, 180)
        a.v_cvt_pk_bf16_f32("v182", "v176", "v177")
        a.v_cvt_pk_bf16_f32("v183", "v178", "v179")
        a.buffer_store_dwordx2("v[182:183]", "v10", "s[24:27]", 0, mods="offen offset:%d" % (32 * nb))
    a.s_mov_b64("exec", "s[48:49]")
    stamp(a, 4)
    if STAMPS:
        a.raw("    s_mul_i32 s57, s3, 7")
        a.raw("    s_add_u32 s57, s57, s2")
    stamp_flush(a, 5, "s57", "s[12:15]", 0x7a0000, "k3")
    a.s_endpgm()
    a.label("k3_ffn")
    a.s_sub_u32("s3", "s2", 224)
    a.s_cmp_ge_u32("s3", 28)
    a.s_cbranch_scc1("k3_done")
    a.s_load_dwordx2("s[4:5]", "s[0:1]", 80)
    a.s_load_dwordx2("s[6:7]", "s[0:1]", 16)
    a.s_load_dwordx2("s[8:9]", "s[0:1]", 0)
    a.s_load_dwordx2("s[10:11]", "s[0:1]", 64)
    a.s_load_dwordx2("s[36:37]", "s[0:1]", 56)
    a.v_and_b32("v1", 1, "v0")
    a.v_lshrrev_b32("v2", 1, "v0")
    a.s_waitcnt(mods="lgkmcnt(0)")
    ws_srd(a, 12, 4)
    srd(a, 16, 6, WO_BYTES)
    srd(a, 20, 8, X_BYTES)
    srd(a, 24, 10, OUT_BYTES)
    srd(a, 28, 36, WG_BYTES)
    a.s_add_u32("s50", "s4", WS_SEL)
    a.s_addc_u32("s51", "s5", 0)
    a.s_load_dwordx4("s[40:43]", "s[50:51]", 0)
    a.v_mul_u32_u24("v3", 896, "v2")
    a.v_lshl_add_u32("v3", "v1", 4, "v3")
    a.s_lshl_b32("s33", "s3", 5)
    for it in range(14):
        a.s_add_u32("s34", "s33", it * 128 * 896)
        a.buffer_load_dwordx4(vr(112 + 4 * it, 4), "v3", "s[28:31]", "s34", mods="offen")
    for it in range(4):
        a.s_add_u32("s34", "s33", it * 128 * 896)
        a.buffer_load_dwordx4(vr(168 + 4 * it, 4), "v3", "s[16:19]", "s34", mods="offen")
    a.v_lshlrev_b32("v4", 1, "v2")
    a.s_mov_b32("s35", WS_H)
    a.s_add_u32("s38", "s35", 3584)
    for it in range(14):
        a.buffer_load_ushort(vr(32 + it), "v4", "s[12:15]", "s35", mods="offen offset:%d" % (256 * it))
        a.buffer_load_ushort(vr(46 + it), "v4", "s[12:15]", "s38", mods="offen offset:%d" % (256 * it))
    a.s_mul_i32("s44", "s40", 896)
    a.s_add_u32("s44", "s44", WS_O)
    a.s_mul_i32("s45", "s41", 896)
    a.s_add_u32("s45", "s45", WS_O)
    for it in range(4):
        a.buffer_load_ushort(vr(60 + it), "v4", "s[12:15]", "s44", mods="offen offset:%d" % (256 * it))
        a.buffer_load_ushort(vr(64 + it), "v4", "s[12:15]", "s45", mods="offen offset:%d" % (256 * it))
    ACC = 72
    for i in range(32):
        a.v_mov_b32(vr(ACC + i), 0)
    for i in range(32, 68):
        a.v_lshlrev_b32(vr(i), 16, vr(i))
    for (kind, nit, wbase, hb) in ((0, 14, 112, (32, 46)), (1, 4, 168, (60, 64))):
        for it in range(nit):
            for q in range(4):
                w = vr(wbase + 4 * it + q)
                a.v_lshlrev_b32("v4", 16, w)
                a.v_and_b32("v5", "0xffff0000", w)
                for tok in range(2):
                    hv = vr(hb[tok] + it)
                    a.v_fmac_f32(vr(ACC + 16 * kind + 8 * tok + 2 * q), hv, "v4")
                    a.v_fmac_f32(vr(ACC + 16 * kind + 8 * tok + 2 * q + 1), hv, "v5")
    a.v_lshlrev_b32("v4", 2, "v0")
    for i in range(32):
        a.ds_write_b32("v4", vr(ACC + i), mods="offset:%d" % (1024 * i))
    a.s_waitcnt(mods="lgkmcnt(0)")
    a.s_barrier()
    SUMS = 32768
    a.v_and_b32("v6", 63, "v0")
    a.v_lshrrev_b32("v5", 1, "v6")
    a.v_lshlrev_b32("v5", 10, "v5")
    a.v_lshl_add_u32("v5", "v1", 2, "v5")
    a.v_lshrrev_b32("v7", 6, "v0")
    a.v_lshl_add_u32("v5", "v7", 8, "v5")
    for kg in range(32):
        a.ds_read_b32(vr(112 + kg), "v5", mods="offset:%d" % (8 * kg))
    a.v_add_f32("v6", "v112", "v113")
    for kg in range(2, 32):
        a.v_add_f32("v6", "v6", vr(112 + kg))
    a.v_add_u32("v7", SUMS, "v4")
    a.ds_write_b32("v7", "v6")
    a.s_waitcnt(mods="lgkmcnt(0)")
    a.s_barrier()
    a.v_cmp_gt_u32("vcc", 32, "v0")
    a.s_and_saveexec_b64("s[46:47]", "vcc")
    a.s_cbranch_execz("k3_done")
    for p in range(4):
        a.ds_read_b32(vr(112 + p), "v7", mods="offset:%d" % (256 * p))
        a.ds_read_b32(vr(116 + p), "v7", mods="offset:%d" % (256 * p + 128))
    a.v_add_f32("v8", "v112", "v113")
    a.v_add_f32("v8", "v8", "v114")
    a.v_add_f32("v8", "v8", "v115")
    a.v_add_f32("v9", "v116", "v117")
    a.v_add_f32("v9", "v9", "v118")
    a.v_add_f32("v9", "v9", "v119")
    a.v_lshrrev_b32("v10", 4, "v0")
    a.v_bfe_u32("v11", "v0", 1, 3)
    a.v_lshl_add_u32("v11", "v1", 3, "v11")
    a.s_lshl_b32("s48", "s3", 4)
    a.v_add_u32("v11", "s48", "v11")
    a.v_cmp_eq_u32("vcc", 0, "v10")
    a.v_mov_b32("v12", "s41")
    a.v_mov_b32("v13", "s40")
    a.v_cndmask_b32("v12", "v12", "v13", "vcc")
    a.v_mov_b32("v13", "s43")
    a.v_mov_b32("v14", "s42")
    a.v_cndmask_b32("v13", "v13", "v14", "vcc")
    a.v_mul_u32_u24("v14", 896, "v12")
    a.v_lshl_add_u32("v14", "v11", 1, "v14")
    a.buffer_load_ushort("v15", "v14", "s[20:23]", 0, mods="offen")
    a.v_lshlrev_b32("v16", 3, "v12")
    a.s_mov_b32("s49", WS_STATS)
    a.buffer_load_dwordx2("v[18:19]", "v16", "s[12:15]", "s49", mods="offen")
    a.v_lshlrev_b32("v15", 16, "v15")
    rne(a, 8, 8)
    a.v_mul_f32("v8", "v8", "v13")
    rne(a, 8, 8)
    final_combine(a, 20, 15, 9, 18, 19, 21, 8)
    a.v_cvt_pk_bf16_f32("v20", "v20", "v20")
    a.buffer_store_short("v20", "v14", "s[24:27]", 0, mods="offen")
    a.label("k3_done")
    a.s_endpgm()
    return a, 448 * SW3, 184


KD = """.section .rodata,"a"
.p2align 6
.amdhsa_kernel {name}
  .amdhsa_next_free_vgpr {vgpr}
  .amdhsa_next_free_sgpr 96
  .amdhsa_accum_offset {acc}
  .amdhsa_group_segment_fixed_size 0
  .amdhsa_kernarg_size 88
  .amdhsa_user_sgpr_count 2
  .amdhsa_user_sgpr_kernarg_segment_ptr 1
  .amdhsa_system_sgpr_workgroup_id_x 1
.end_amdhsa_kernel
"""
HEADER = """; LN + sliding-window attention + MoD SwiGLU FFN, three launches (generated by dev/gen2.py)
"""


def build(kernels):
    out = [HEADER]
    for (name, a, lds, grid, block, vgpr) in kernels:
        out.append("; @launch kernel=%s grid=(%d,1,1) block=(%d,1,1) lds=%d\n" % (name, grid, block, lds))
    out.append('.amdgcn_target "amdgcn-amd-amdhsa--gfx950"\n')
    for (name, a, lds, grid, block, vgpr) in kernels:
        out.append(".text\n.globl %s\n.p2align 8\n.type %s,@function\n" % (name, name))
        out.append(a.finalize())
        out.append(KD.format(name=name, vgpr=vgpr, acc=(vgpr + 3) // 4 * 4))
    return "".join(out)


if __name__ == "__main__":
    if len(sys.argv) > 2 and sys.argv[2] == "stamps":
        STAMPS = True
    k1, l1, v1 = gen_k1()
    k2, l2, v2 = gen_k2()
    k3, l3, v3 = gen_k3()
    ks = [("k1_kernel", k1, l1, 224, 256, v1), ("k2_kernel", k2, l2, 256 + NF1, 512, v2), ("k3_kernel", k3, l3, 224 + 28, 256, v3)]
    open(sys.argv[1] if len(sys.argv) > 1 else "out.s", "w").write(build(ks))
```

```python
import sys, struct, math
from asmgen import Asm, vr, sr

S = 2048; D = 448; NQKV = 1344; F = 1792
WS_QKV = 0
WS_STATS = 0x540000
WS_R = 0x544000
WS_O = 0x548000
WS_H = 0x708000
WS_SEL = 0x70A000
WS_END = 0x70B000
X_BYTES = S * D * 2
WQKV_BYTES = D * NQKV * 2
WO_BYTES = D * D * 2
WG_BYTES = D * F * 2
OUT_BYTES = S * D * 2
SA = 912
NEG = "0xf149f2ca"
LOG2E = 1.4426950408889634
NF1 = 112
STAMPS = False


def f32hex(x):
    return "0x%08x" % struct.unpack("<I", struct.pack("<f", x))[0]


def stamp(a, i):
    if not STAMPS:
        return
    a.raw("    s_memtime s[60:61]")
    a.raw("    s_waitcnt lgkmcnt(0)")
    a.raw("    s_mov_b32 s%d, s60" % (64 + i))


def stamp_flush(a, n, wgreg, srdname, base, tag):
    if not STAMPS:
        return
    a.raw("    v_cmp_eq_u32 vcc, 0, v0")
    a.raw("    s_and_saveexec_b64 s[62:63], vcc")
    a.raw("    s_cbranch_execz stamp_skip_%s" % tag)
    a.raw("    s_lshl_b32 s58, %s, 6" % wgreg)
    a.raw("    s_add_u32 s58, s58, 0x%x" % base)
    for i in range(n):
        a.raw("    v_mov_b32 v100, s%d" % (64 + i))
        a.raw("    v_mov_b32 v101, %d" % (4 * i))
        a.raw("    buffer_store_dword v100, v101, %s, s58 offen" % srdname)
    a.raw("stamp_skip_%s:" % tag)
    a.raw("    s_mov_b64 exec, s[62:63]")


def srd(a, sb, sp, size):
    a.s_mov_b32(sr(sb), sr(sp))
    a.s_mov_b32(sr(sb + 1), sr(sp + 1))
    a.s_mov_b32(sr(sb + 2), "0x%x" % size)
    a.s_mov_b32(sr(sb + 3), "0x00020000")


def ws_srd(a, sb, sp):
    srd(a, sb, sp, WS_END + (0x100000 if STAMPS else 0))


def rne(a, vd, vs):
    a.v_cvt_pk_bf16_f32(vr(vd), vr(vs), vr(vs))
    a.v_lshlrev_b32(vr(vd), 16, vr(vd))


def xlane(a, op, v, vtmp, va16, va32):
    a.ds_bpermute_b32(vr(vtmp), vr(va16), vr(v))
    a.I(op, vr(v), vr(v), vr(vtmp))
    a.ds_bpermute_b32(vr(vtmp), vr(va32), vr(v))
    a.I(op, vr(v), vr(v), vr(vtmp))


def decode_7x32(a):
    a.s_and_b32("s3", "s2", 7)
    a.s_lshr_b32("s4", "s2", 3)
    a.s_mul_i32("s5", "s4", 37)
    a.s_lshr_b32("s5", "s5", 8)
    a.s_mul_i32("s6", "s5", 7)
    a.s_sub_u32("s2", "s4", "s6")
    a.s_lshl_b32("s3", "s3", 2)
    a.s_add_u32("s3", "s3", "s5")


def gen_k1():
    a = Asm()
    SW = 416
    WBUF = 64 * SW
    A_BASE = 3 * WBUF
    a.label("k1_kernel")
    a.s_cmp_ge_u32("s2", 224)
    a.s_cbranch_scc1("k1_done")
    a.s_load_dwordx4("s[36:39]", "s[0:1]", 0)
    a.s_load_dwordx2("s[8:9]", "s[0:1]", 32)
    a.s_load_dwordx2("s[10:11]", "s[0:1]", 80)
    decode_7x32(a)
    a.v_and_b32("v1", 63, "v0")
    a.v_and_b32("v2", 15, "v0")
    a.v_bfe_u32("v3", "v0", 4, 2)
    a.v_lshrrev_b32("v5", 6, "v0")
    a.v_readfirstlane_b32("s28", "v5")
    a.s_waitcnt(mods="lgkmcnt(0)")
    srd(a, 12, 36, X_BYTES)
    srd(a, 16, 38, WQKV_BYTES)
    ws_srd(a, 20, 10)
    srd(a, 24, 8, D * 2)
    stamp(a, 0)
    a.s_lshl_b32("s29", "s3", 6)
    a.s_lshl_b32("s30", "s28", 4)
    a.s_add_u32("s29", "s29", "s30")
    a.v_add_u32("v6", "s29", "v2")
    a.s_movk_i32("s31", 896)
    a.v_mul_lo_u32("v4", "v6", "s31")
    a.v_lshl_add_u32("v4", "v3", 4, "v4")
    for t in range(14):
        a.buffer_load_dwordx4(vr(16 + 4 * t, 4), "v4", "s[12:15]", 0, mods="offen offset:%d" % (64 * t))
    a.v_lshrrev_b32("v7", 3, "v0")
    a.v_and_b32("v8", 7, "v0")
    a.s_movk_i32("s32", 2688)
    a.v_mul_lo_u32("v9", "v7", "s32")
    a.v_lshl_add_u32("v9", "v8", 4, "v9")
    a.v_add_u32("v10", "0x15000", "v9")
    a.s_mul_i32("s33", "s2", 384)
    a.v_mul_u32_u24("v11", SW, "v7")
    a.v_lshl_add_u32("v11", "v8", 4, "v11")
    WR = (184, 208)

    def w_loads(ch):
        base = WR[ch % 2]
        a.s_add_u32("s34", "s33", ch * 64 * 2688)
        for i in range(2):
            for j in range(3):
                a.buffer_load_dwordx4(vr(base + 4 * (3 * i + j), 4), "v9" if i == 0 else "v10", "s[16:19]", "s34",
                                      mods="offen offset:%d" % (128 * j))

    def w_writes(ch):
        base = WR[ch % 2]
        for i in range(2):
            for j in range(3):
                a.ds_write_b128("v11" if ch % 3 < 2 else "v7", vr(base + 4 * (3 * i + j), 4),
                                mods="offset:%d" % ((ch % 3 % 2) * WBUF + 32 * i * SW + 128 * j))

    w_loads(0)
    w_loads(1)
    a.v_xor_b32("v12", 16, "v1")
    a.v_lshlrev_b32("v12", 2, "v12")
    a.v_xor_b32("v13", 32, "v1")
    a.v_lshlrev_b32("v13", 2, "v13")
    if STAMPS:
        a.s_waitcnt(mods="vmcnt(12)")
    stamp(a, 1)
    for i in range(56):
        a.v_lshlrev_b32(vr(72 + 2 * i), 16, vr(16 + i))
        a.v_and_b32(vr(73 + 2 * i), "0xffff0000", vr(16 + i))
    a.v_pk_add_f32("v[14:15]", "v[72:73]", "v[74:75]")
    for i in range(2, 56):
        a.v_pk_add_f32("v[14:15]", "v[14:15]", vr(72 + 2 * i, 2))
    a.v_add_f32("v14", "v14", "v15")
    xlane(a, "v_add_f32", 14, 15, 12, 13)
    a.v_mul_f32("v14", "0x3b124925", "v14")
    a.v_sub_f32("v232", 0, "v14")
    a.v_mov_b32("v233", "v232")
    a.v_mov_b32("v234", 0)
    a.v_mov_b32("v235", 0)
    for i in range(56):
        a.v_pk_add_f32("v[236:237]", vr(72 + 2 * i, 2), "v[232:233]")
        a.v_pk_fma_f32("v[234:235]", "v[236:237]", "v[236:237]", "v[234:235]")
    a.v_add_f32("v234", "v234", "v235")
    xlane(a, "v_add_f32", 234, 15, 12, 13)
    a.v_mul_f32("v234", "0x3b124925", "v234")
    rne(a, 14, 14)
    rne(a, 234, 234)
    a.v_add_f32("v234", "0x3727c5ac", "v234")
    rne(a, 234, 234)
    a.v_sqrt_f32("v234", "v234")
    rne(a, 234, 234)
    a.v_rcp_f32("v234", "v234")
    a.v_mov_b32("v235", "v234")
    a.v_sub_f32("v232", 0, "v14")
    a.v_mov_b32("v233", "v232")
    for i in range(56):
        p = vr(72 + 2 * i, 2)
        a.v_pk_add_f32(p, p, "v[232:233]")
        a.v_cvt_pk_bf16_f32(vr(16 + i), vr(72 + 2 * i), vr(73 + 2 * i))
        a.v_lshlrev_b32(vr(72 + 2 * i), 16, vr(16 + i))
        a.v_and_b32(vr(73 + 2 * i), "0xffff0000", vr(16 + i))
        a.v_pk_mul_f32(p, p, "v[234:235]")
        a.v_cvt_pk_bf16_f32(vr(16 + i), vr(72 + 2 * i), vr(73 + 2 * i))
    stamp(a, 2)
    a.s_lshl_b32("s35", "s28", 8)
    a.s_add_u32("s35", "s35", A_BASE)
    a.v_lshlrev_b32("v15", 4, "v2")
    a.v_add_u32("v15", "s35", "v15")
    a.v_and_b32("v236", 1, "v3")
    a.v_lshl_add_u32("v15", "v236", 11, "v15")
    a.v_lshrrev_b32("v236", 1, "v3")
    a.v_lshl_add_u32("v15", "v236", 3, "v15")
    for t in range(14):
        a.ds_write2st64_b64("v15", vr(16 + 4 * t, 2), vr(18 + 4 * t, 2), mods="offset0:%d offset1:%d" % (8 * t, 8 * t + 2))
    w_writes(0)
    w_loads(2)
    w_writes(1)
    w_loads(3)
    a.s_cmp_lg_u32("s2", 0)
    a.s_cbranch_scc1("k1_skip_r")
    a.v_lshlrev_b32("v236", 4, "v3")
    for t in range(14):
        a.buffer_load_dwordx4(vr(120 + 4 * t, 4), "v236", "s[24:27]", 0, mods="offen offset:%d" % (64 * t))
    a.v_mov_b32("v237", 0)
    for i in range(56):
        a.v_dot2_f32_bf16("v237", vr(16 + i), vr(120 + i), "v237")
    xlane(a, "v_add_f32", 237, 238, 12, 13)
    rne(a, 237, 237)
    a.v_cmp_gt_u32("vcc", 16, "v1")
    a.s_and_saveexec_b64("s[40:41]", "vcc")
    a.v_lshlrev_b32("v238", 2, "v6")
    a.v_add_u32("v238", "0x%x" % WS_R, "v238")
    a.buffer_store_dword("v237", "v238", "s[20:23]", 0, mods="offen")
    a.v_lshlrev_b32("v238", 3, "v6")
    a.v_add_u32("v238", "0x%x" % WS_STATS, "v238")
    a.v_mov_b32("v236", "v14")
    a.v_mov_b32("v237", "v234")
    a.buffer_store_dwordx2("v[236:237]", "v238", "s[20:23]", 0, mods="offen")
    a.s_mov_b64("exec", "s[40:41]")
    a.label("k1_skip_r")
    a.v_lshlrev_b32("v4", 4, "v2")
    a.v_lshl_add_u32("v4", "v3", 10, "v4")
    a.v_add_u32("v4", A_BASE, "v4")
    a.v_bfe_u32("v5", "v0", 2, 4)
    a.v_mul_u32_u24("v5", SW, "v5")
    a.v_and_b32("v7", 3, "v0")
    a.v_lshl_add_u32("v5", "v7", 3, "v5")
    a.s_mul_i32("s35", "s28", 96)
    a.v_add_u32("v5", "s35", "v5")
    a.v_add_u32("v6", 2 * WBUF, "v5")
    a.v_add_u32("v7", 2 * WBUF, "v11")
    ACC = 72
    for i in range(48):
        a.v_mov_b32(vr(ACC + i), 0)
    a.s_waitcnt(mods="lgkmcnt(0)")
    stamp(a, 3)
    a.s_barrier()
    stamp(a, 4)
    AF, BF = 120, 152

    def frag_reads(step):
        ch, tl = step // 2, step % 2
        st = step % 2
        for mb in range(4):
            a.ds_read_b128(vr(AF + 16 * st + 4 * mb, 4), "v4", mods="offset:%d" % (4096 * step + mb * 256))
        for nb in range(3):
            for h in range(2):
                a.ds_read_b64_tr_b16(vr(BF + 12 * st + 4 * nb + 2 * h, 2), "v5" if ch % 3 < 2 else "v6",
                                     mods="offset:%d" % ((ch % 3 % 2) * WBUF + (32 * tl + 16 * h) * SW + 32 * nb))

    def mfmas(step):
        st = step % 2
        for mb in range(4):
            for nb in range(3):
                acc = vr(ACC + 4 * (3 * mb + nb), 4)
                a.v_mfma_f32_16x16x32_bf16(acc, vr(BF + 12 * st + 4 * nb, 4), vr(AF + 16 * st + 4 * mb, 4), acc)

    frag_reads(0)
    for ch in range(7):
        frag_reads(2 * ch + 1)
        mfmas(2 * ch)
        if ch + 2 < 7:
            w_writes(ch + 2)
            if ch + 4 < 7:
                w_loads(ch + 4)
        if ch + 1 < 7:
            frag_reads(2 * ch + 2)
        mfmas(2 * ch + 1)
        if ch + 1 < 7:
            a.s_waitcnt(mods="lgkmcnt(0)")
            a.s_barrier()
    stamp(a, 5)
    a.s_mul_i32("s35", "s2", 192)
    a.s_mul_i32("s36", "s28", 48)
    a.s_add_u32("s35", "s35", "s36")
    a.v_lshlrev_b32("v5", 2, "v3")
    a.v_add_u32("v5", "s35", "v5")
    a.s_lshl_b32("s36", "s3", 6)
    a.v_add_u32("v7", "s36", "v2")
    a.v_mul_u32_u24("v7", 56, "v7")
    a.s_mov_b32("s37", 9363)
    a.s_mov_b32("s38", 114632)
    for nb in range(3):
        a.v_add_u32("v8", 16 * nb, "v5")
        a.v_mul_lo_u32("v9", "v8", "s37")
        a.v_lshrrev_b32("v9", 18, "v9")
        a.v_mul_lo_u32("v9", "v9", "s38")
        a.v_lshl_add_u32("v9", "v8", 1, "v9")
        a.v_add_u32(vr(10 + nb), "v9", "v7")
    for mb in range(4):
        for nb in range(3):
            acc = ACC + 4 * (3 * mb + nb)
            a.v_cvt_pk_bf16_f32(vr(acc), vr(acc), vr(acc + 1))
            a.v_cvt_pk_bf16_f32(vr(acc + 1), vr(acc + 2), vr(acc + 3))
            a.buffer_store_dwordx2(vr(acc, 2), vr(10 + nb), "s[20:23]", 0, mods="offen offset:%d" % (896 * mb))
    stamp(a, 6)
    if STAMPS:
        a.raw("    s_mul_i32 s57, s3, 7")
        a.raw("    s_add_u32 s57, s57, s2")
    stamp_flush(a, 7, "s57", "s[20:23]", 0x780000, "k1")
    a.label("k1_done")
    a.s_endpgm()
    return a, A_BASE + 57344, 240


def gen_k2():
    a = Asm()
    HS = 114688
    VB = 24576
    a.label("k2_kernel")
    a.s_cmp_ge_u32("s2", 256)
    a.s_cbranch_scc1("k2_ffn")
    a.s_load_dwordx2("s[4:5]", "s[0:1]", 80)
    a.v_and_b32("v1", 63, "v0")
    a.v_and_b32("v2", 15, "v0")
    a.v_bfe_u32("v3", "v0", 4, 2)
    a.v_lshrrev_b32("v5", 6, "v0")
    a.v_readfirstlane_b32("s28", "v5")
    a.s_and_b32("s29", "s2", 7)
    a.s_lshl_b32("s29", "s29", 1)
    a.s_lshr_b32("s30", "s2", 3)
    a.s_lshr_b32("s31", "s30", 4)
    a.s_add_u32("s29", "s29", "s31")
    a.s_and_b32("s30", "s30", 15)
    a.s_waitcnt(mods="lgkmcnt(0)")
    ws_srd(a, 8, 4)
    stamp(a, 0)
    a.s_mul_i32("s31", "s29", HS)
    a.s_mul_i32("s32", "s30", 128 * 56)
    a.s_add_u32("s31", "s31", "s32")
    a.s_add_u32("s33", "s31", 16 * HS - 256 * 56)
    a.s_add_u32("s34", "s33", 16 * HS)
    a.v_lshlrev_b32("v4", 4, "v0")
    a.v_add_u32("v5", 8192, "v4")
    a.v_add_u32("v6", 16384, "v4")
    SR = 36
    for i, vo in enumerate(("v4", "v5", "v6")):
        a.buffer_load_dwordx4(vr(SR + 4 * i, 4), vo, "s[8:11]", "s33", mods="offen")
    for i, vo in enumerate(("v4", "v5", "v6")):
        a.buffer_load_dwordx4(vr(SR + 12 + 4 * i, 4), vo, "s[8:11]", "s34", mods="offen")
    a.s_lshl_b32("s35", "s28", 4)
    a.v_add_u32("v7", "s35", "v2")
    a.v_mul_u32_u24("v7", 56, "v7")
    a.v_lshl_add_u32("v7", "v3", 4, "v7")
    QF = 16
    a.buffer_load_dwordx2(vr(QF, 2), "v7", "s[8:11]", "s31", mods="offen")
    a.buffer_load_dwordx2(vr(QF + 2, 2), "v7", "s[8:11]", "s31", mods="offen offset:8")
    a.s_lshl_b32("s36", "s30", 3)
    a.s_add_u32("s36", "s36", "s28")
    a.s_sub_i32("s36", 16, "s36")
    a.s_max_i32("s36", "s36", 0)
    a.s_mov_b32("s37", NEG)
    a.v_lshlrev_b32("v8", 2, "v3")
    a.v_sub_u32("v8", "v8", "v2")
    a.s_cmp_gt_i32("s36", 0)
    a.s_cselect_b32("s38", -1000, 0)
    a.v_add_u32("v9", "s38", "v8")
    a.v_mov_b32("v10", "s37")
    for r in range(4):
        a.v_cmp_lt_i32("vcc", -r, "v9")
        a.v_cndmask_b32(vr(20 + r), "v10", 0, "vcc")
    for r in range(4):
        a.v_cmp_ge_i32("vcc", -r, "v8")
        a.v_cndmask_b32(vr(24 + r), "v10", 0, "vcc")
    a.v_cmp_eq_u32("vcc", 3, "v3")
    a.v_cndmask_b32(vr(QF + 2), vr(QF + 2), 0, "vcc")
    a.v_cndmask_b32(vr(QF + 3), vr(QF + 3), 0, "vcc")
    for i in range(3):
        a.ds_write_b128("v4", vr(SR + 4 * i, 4), mods="offset:%d" % (8192 * i))
    for i in range(3):
        a.ds_write_b128("v4", vr(SR + 12 + 4 * i, 4), mods="offset:%d" % (VB + 8192 * i))
    a.s_waitcnt(mods="lgkmcnt(0)")
    stamp(a, 1)
    a.s_barrier()
    stamp(a, 2)
    KF = 104
    def kread(b):
        a.ds_read_b64(vr(KF + 4 * (b % 6), 2), "v7", mods="offset:%d" % (896 * b))
        a.ds_read_b64(vr(KF + 4 * (b % 6) + 2, 2), "v7", mods="offset:%d" % (896 * b + 8))
    for b in range(6):
        kread(b)
    for b in range(17):
        if b == 0:
            cop = "v[20:23]"
        elif b == 16:
            cop = "v[24:27]"
        else:
            a.s_cmp_gt_i32("s36", b)
            a.s_cselect_b32("s38", "s37", 0)
            for r in range(4):
                a.v_mov_b32(vr(28 + 4 * (b % 2) + r), "s38")
            cop = vr(28 + 4 * (b % 2), 4)
        a.v_mfma_f32_16x16x32_bf16(vr(SR + 4 * b, 4), vr(KF + 4 * (b % 6), 4), vr(QF, 4), cop)
        if b + 6 < 17:
            kread(b + 6)
    if STAMPS:
        a.v_mov_b32("v12", vr(SR + 64))
    stamp(a, 3)
    a.v_bfe_u32("v11", "v0", 2, 4)
    a.v_add_u32("v11", "s35", "v11")
    a.v_mul_u32_u24("v11", 56, "v11")
    a.v_and_b32("v12", 3, "v0")
    a.v_lshl_add_u32("v11", "v12", 3, "v11")
    a.v_add_u32("v11", VB, "v11")
    a.v_max3_f32("v12", vr(SR), vr(SR + 1), vr(SR + 2))
    i = 3
    while i + 1 < 68:
        a.v_max3_f32("v12", "v12", vr(SR + i), vr(SR + i + 1))
        i += 2
    if i < 68:
        a.v_max_f32("v12", "v12", vr(SR + i))
    a.v_xor_b32("v13", 16, "v1")
    a.v_lshlrev_b32("v13", 2, "v13")
    a.v_xor_b32("v14", 32, "v1")
    a.v_lshlrev_b32("v14", 2, "v14")
    xlane(a, "v_max_f32", 12, 15, 13, 14)
    c1 = (28 ** -0.5) * LOG2E
    a.s_mov_b32("s39", f32hex(c1))
    a.v_mul_f32("v12", "s39", "v12")
    for i in range(68):
        a.v_fma_f32(vr(SR + i), vr(SR + i), "s39", "-v12")
    for i in range(68):
        a.v_exp_f32(vr(SR + i), vr(SR + i))
    a.v_pk_add_f32("v[8:9]", vr(SR, 2), vr(SR + 2, 2))
    for i in range(2, 34):
        a.v_pk_add_f32("v[8:9]", "v[8:9]", vr(SR + 2 * i, 2))
    a.v_add_f32("v8", "v8", "v9")
    for i in range(34):
        a.v_cvt_pk_bf16_f32(vr(SR + i), vr(SR + 2 * i), vr(SR + 2 * i + 1))
    PK = SR
    VF = 70
    xlane(a, "v_add_f32", 8, 15, 13, 14)
    a.v_rcp_f32("v8", "v8")
    OA = 28
    for db in range(2):
        for j in range(8):
            for h in range(2):
                a.ds_read_b64_tr_b16(vr(VF + 4 * j + 2 * h, 2), "v11", mods="offset:%d" % ((32 * j + 16 * h) * 56 + 32 * db))
        a.ds_read_b64_tr_b16(vr(VF + 32, 2), "v11", mods="offset:%d" % (256 * 56 + 32 * db))
        for j in range(8):
            a.v_mfma_f32_16x16x32_bf16(vr(OA + 4 * db, 4), vr(VF + 4 * j, 4), vr(PK + 4 * j, 4),
                                       vr(OA + 4 * db, 4) if j > 0 else 0)
        a.v_mfma_f32_16x16x16_bf16(vr(OA + 4 * db, 4), vr(VF + 32, 2), vr(PK + 32, 2), vr(OA + 4 * db, 4))
    stamp(a, 4)
    a.s_lshl_b32("s40", "s30", 7)
    a.s_add_u32("s40", "s40", "s35")
    a.v_add_u32("v4", "s40", "v2")
    a.s_movk_i32("s41", 896)
    a.v_mul_lo_u32("v4", "v4", "s41")
    a.v_lshl_add_u32("v4", "v3", 3, "v4")
    a.s_mul_i32("s42", "s29", 56)
    a.s_add_u32("s42", "s42", WS_O)
    for i in range(8):
        a.v_mul_f32(vr(OA + i), vr(OA + i), "v8")
    a.v_cvt_pk_bf16_f32("v12", vr(OA), vr(OA + 1))
    a.v_cvt_pk_bf16_f32("v13", vr(OA + 2), vr(OA + 3))
    a.v_cvt_pk_bf16_f32("v14", vr(OA + 4), vr(OA + 5))
    a.v_cvt_pk_bf16_f32("v15", vr(OA + 6), vr(OA + 7))
    a.buffer_store_dwordx2("v[12:13]", "v4", "s[8:11]", "s42", mods="offen")
    a.v_cmp_gt_u32("vcc", 48, "v1")
    a.s_and_saveexec_b64("s[44:45]", "vcc")
    a.buffer_store_dwordx2("v[14:15]", "v4", "s[8:11]", "s42", mods="offen offset:32")
    a.s_mov_b64("exec", "s[44:45]")
    stamp(a, 5)
    stamp_flush(a, 6, "s2", "s[8:11]", 0x790000, "k2")
    a.s_endpgm()
    a.label("k2_ffn")
    gen_ffn1(a)
    a.s_endpgm()
    return a, 49152, 128


def sigmoid_bf16(a, vd, vx, vt):
    a.v_mul_f32(vr(vt), f32hex(-LOG2E), vr(vx))
    a.v_exp_f32(vr(vt), vr(vt))
    a.v_add_f32(vr(vt), 1.0, vr(vt))
    a.v_rcp_f32(vr(vt), vr(vt))
    rne(a, vd, vt)


def gen_ffn1(a):
    TOP = 4096
    a.s_sub_u32("s29", "s2", 256)
    a.s_cmp_ge_u32("s29", NF1)
    a.s_cbranch_scc1("k2_done")
    a.s_load_dwordx2("s[4:5]", "s[0:1]", 80)
    a.s_load_dwordx2("s[6:7]", "s[0:1]", 0)
    a.s_load_dwordx4("s[12:15]", "s[0:1]", 40)
    a.v_lshlrev_b32("v4", 4, "v0")
    a.v_mov_b32("v5", TOP)
    a.s_waitcnt(mods="lgkmcnt(0)")
    ws_srd(a, 8, 4)
    srd(a, 16, 6, X_BYTES)
    srd(a, 20, 12, WG_BYTES)
    srd(a, 24, 14, WG_BYTES)
    a.s_mov_b32("s30", WS_R)
    stamp(a, 0)
    a.buffer_load_dwordx4("v[16:19]", "v4", "s[8:11]", "s30", mods="offen")
    a.v_lshrrev_b32("v8", 1, "v0")
    a.s_movk_i32("s33", 3584)
    a.v_mul_lo_u32("v9", "v8", "s33")
    a.v_and_b32("v10", 1, "v0")
    a.v_lshl_add_u32("v9", "v10", 4, "v9")
    a.s_lshl_b32("s34", "s29", 5)
    WB = 96
    for it in range(2):
        a.s_add_u32("s35", "s34", it * 256 * 3584)
        a.buffer_load_dwordx4(vr(WB + 8 * it, 4), "v9", "s[20:23]", "s35", mods="offen")
        a.buffer_load_dwordx4(vr(WB + 4 + 8 * it, 4), "v9", "s[24:27]", "s35", mods="offen")
    a.v_lshlrev_b32("v11", 2, "v0")
    for e in range(4):
        a.v_ashrrev_i32("v9", 31, vr(16 + e))
        a.v_or_b32("v9", "0x80000000", "v9")
        a.v_xor_b32("v9", "v9", vr(16 + e))
        a.v_and_b32("v9", "0xffff0000", "v9")
        a.v_sub_u32("v12", 0xFFFF - e, "v11")
        a.v_or_b32(vr(20 + e), "v9", "v12")
    a.v_max_u32("v14", "v20", "v21")
    a.v_min_u32("v15", "v20", "v21")
    for e in (22, 23):
        a.v_min_u32("v12", "v14", vr(e))
        a.v_max_u32("v14", "v14", vr(e))
        a.v_max_u32("v15", "v15", "v12")
    a.v_and_b32("v13", 63, "v0")
    for m in (1, 2, 4, 8, 16, 32):
        a.v_xor_b32("v12", m, "v13")
        a.v_lshlrev_b32("v12", 2, "v12")
        a.ds_bpermute_b32("v20", "v12", "v14")
        a.ds_bpermute_b32("v21", "v12", "v15")
        a.v_min_u32("v22", "v14", "v20")
        a.v_max_u32("v14", "v14", "v20")
        a.v_max_u32("v15", "v15", "v21")
        a.v_max_u32("v15", "v15", "v22")
    a.v_lshrrev_b32("v12", 6, "v0")
    a.v_lshl_add_u32("v12", "v12", 3, "v5")
    a.ds_write_b64("v12", "v[14:15]")
    a.s_waitcnt(mods="lgkmcnt(0)")
    a.s_barrier()
    for i in range(4):
        a.ds_read_b128(vr(16 + 4 * i, 4), "v5", mods="offset:%d" % (16 * i))
    for i in range(1, 8):
        a.v_min_u32("v12", "v16", vr(16 + 2 * i))
        a.v_max_u32("v16", "v16", vr(16 + 2 * i))
        a.v_max_u32("v17", "v17", vr(17 + 2 * i))
        a.v_max_u32("v17", "v17", "v12")
    a.v_and_b32("v12", "0xffff", "v16")
    a.v_sub_u32("v12", "0xffff", "v12")
    a.v_and_b32("v13", "0xffff", "v17")
    a.v_sub_u32("v13", "0xffff", "v13")
    stamp(a, 1)
    a.s_mov_b32("s31", WS_STATS)
    a.v_lshlrev_b32("v14", 3, "v12")
    a.v_lshlrev_b32("v15", 3, "v13")
    a.buffer_load_dwordx2("v[24:25]", "v14", "s[8:11]", "s31", mods="offen")
    a.buffer_load_dwordx2("v[26:27]", "v15", "s[8:11]", "s31", mods="offen")
    a.v_lshlrev_b32("v14", 2, "v12")
    a.v_lshlrev_b32("v15", 2, "v13")
    a.buffer_load_dword("v28", "v14", "s[8:11]", "s30", mods="offen")
    a.buffer_load_dword("v29", "v15", "s[8:11]", "s30", mods="offen")
    a.s_movk_i32("s32", 896)
    a.v_mul_lo_u32("v14", "v12", "s32")
    a.v_lshl_add_u32("v14", "v8", 1, "v14")
    a.v_mul_lo_u32("v15", "v13", "s32")
    a.v_lshl_add_u32("v15", "v8", 1, "v15")
    for it in range(2):
        a.buffer_load_ushort(vr(16 + it), "v14", "s[16:19]", 0, mods="offen offset:%d" % (512 * it))
        a.buffer_load_ushort(vr(18 + it), "v15", "s[16:19]", 0, mods="offen offset:%d" % (512 * it))
    for it in range(2):
        for (base, m, rs) in ((16, 24, 25), (18, 26, 27)):
            x = vr(base + it)
            a.v_lshlrev_b32(x, 16, x)
            a.v_sub_f32(x, x, vr(m))
            a.v_cvt_pk_bf16_f32(x, x, x)
            a.v_lshlrev_b32(x, 16, x)
            a.v_mul_f32(x, x, vr(rs))
            a.v_cvt_pk_bf16_f32(x, x, x)
            a.v_lshlrev_b32(x, 16, x)
    stamp(a, 2)
    ACC = 64
    for i in range(32):
        a.v_mov_b32(vr(ACC + i), 0)
    for it in range(2):
        for mat in range(2):
            for q in range(4):
                w = vr(WB + 8 * it + 4 * mat + q)
                a.v_lshlrev_b32("v30", 16, w)
                a.v_and_b32("v31", "0xffff0000", w)
                for tok in range(2):
                    xv = vr((16, 18)[tok] + it)
                    a.v_fmac_f32(vr(ACC + 16 * mat + 8 * tok + 2 * q), xv, "v30")
                    a.v_fmac_f32(vr(ACC + 16 * mat + 8 * tok + 2 * q + 1), xv, "v31")
    stamp(a, 3)
    for rr in (2, 4, 8):
        for i in range(32):
            a.v_add_f32(vr(ACC + i), vr(ACC + i), vr(ACC + i), mods="row_ror:%d" % rr)
    a.v_and_b32("v30", 63, "v0")
    for m in (16, 32):
        a.v_xor_b32("v31", m, "v30")
        a.v_lshlrev_b32("v31", 2, "v31")
        for i in range(0, 32, 8):
            for q in range(8):
                a.ds_bpermute_b32(vr(96 + q), "v31", vr(ACC + i + q))
            for q in range(8):
                a.v_add_f32(vr(ACC + i + q), vr(ACC + i + q), vr(96 + q))
    a.v_lshrrev_b32("v31", 6, "v0")
    a.v_lshlrev_b32("v31", 8, "v31")
    a.v_lshl_add_u32("v31", "v10", 7, "v31")
    a.v_cmp_gt_u32("vcc", 2, "v30")
    a.s_and_saveexec_b64("s[36:37]", "vcc")
    for i in range(8):
        a.ds_write_b128("v31", vr(ACC + 4 * i, 4), mods="offset:%d" % (16 * i))
    a.s_mov_b64("exec", "s[36:37]")
    a.s_waitcnt(mods="lgkmcnt(0)")
    a.s_barrier()
    a.v_cmp_gt_u32("vcc", 32, "v0")
    a.s_and_saveexec_b64("s[36:37]", "vcc")
    a.s_cbranch_execz("k2_f1_skip2")
    a.v_bfe_u32("v16", "v0", 3, 1)
    a.v_lshrrev_b32("v17", 4, "v0")
    a.v_and_b32("v18", 7, "v0")
    a.v_lshl_add_u32("v18", "v17", 3, "v18")
    a.v_lshlrev_b32("v18", 2, "v18")
    a.v_lshl_add_u32("v18", "v16", 7, "v18")
    for w in range(8):
        a.ds_read_b32(vr(64 + w), "v18", mods="offset:%d" % (256 * w))
        a.ds_read_b32(vr(72 + w), "v18", mods="offset:%d" % (256 * w + 64))
    a.v_add_f32("v20", "v64", "v65")
    a.v_add_f32("v21", "v72", "v73")
    for w in range(2, 8):
        a.v_add_f32("v20", "v20", vr(64 + w))
        a.v_add_f32("v21", "v21", vr(72 + w))
    rne(a, 20, 20)
    rne(a, 21, 21)
    a.v_mul_f32("v22", f32hex(-LOG2E), "v20")
    a.v_exp_f32("v22", "v22")
    a.v_add_f32("v22", 1.0, "v22")
    a.v_rcp_f32("v22", "v22")
    a.v_mul_f32("v22", "v22", "v20")
    rne(a, 22, 22)
    a.v_mul_f32("v22", "v22", "v21")
    a.v_cvt_pk_bf16_f32("v22", "v22", "v22")
    a.v_mul_u32_u24("v16", 1792, "v17")
    a.v_and_b32("v17", 15, "v0")
    a.v_add_u32("v16", "v16", "v17")
    a.s_lshl_b32("s38", "s29", 4)
    a.v_add_u32("v16", "s38", "v16")
    a.v_lshlrev_b32("v16", 1, "v16")
    a.s_mov_b32("s39", WS_H)
    a.buffer_store_short("v22", "v16", "s[8:11]", "s39", mods="offen")
    a.label("k2_f1_skip2")
    a.s_mov_b64("exec", "s[36:37]")
    stamp(a, 4)
    stamp_flush(a, 5, "s29", "s[8:11]", 0x7b0000, "f1")
    a.s_cmp_lg_u32("s29", 0)
    a.s_cbranch_scc1("k2_done")
    sigmoid_bf16(a, 28, 28, 16)
    sigmoid_bf16(a, 29, 29, 16)
    a.v_mov_b32("v16", "v12")
    a.v_mov_b32("v17", "v13")
    a.v_mov_b32("v18", "v28")
    a.v_mov_b32("v19", "v29")
    a.v_mov_b32("v20", WS_SEL)
    a.v_cmp_eq_u32("vcc", 0, "v0")
    a.s_and_saveexec_b64("s[36:37]", "vcc")
    a.buffer_store_dwordx4("v[16:19]", "v20", "s[8:11]", 0, mods="offen")
    a.label("k2_done")


def final_combine(a, vout, vx, vattn, vm, vrs, vt, vy2=None):
    rne(a, vattn, vattn)
    a.v_add_f32(vr(vattn), vr(vx), vr(vattn))
    rne(a, vattn, vattn)
    a.v_sub_f32(vr(vt), vr(vx), vr(vm))
    rne(a, vt, vt)
    a.v_mul_f32(vr(vt), vr(vt), vr(vrs))
    rne(a, vt, vt)
    if vy2 is not None:
        a.v_add_f32(vr(vt), vr(vt), vr(vy2))
        rne(a, vt, vt)
    a.v_add_f32(vr(vout), vr(vattn), vr(vt))


def gen_k3():
    a = Asm()
    SW3 = 160
    a.label("k3_kernel")
    a.s_cmp_ge_u32("s2", 224)
    a.s_cbranch_scc1("k3_ffn")
    a.s_load_dwordx2("s[36:37]", "s[0:1]", 80)
    a.s_load_dwordx2("s[38:39]", "s[0:1]", 16)
    a.s_load_dwordx2("s[8:9]", "s[0:1]", 0)
    a.s_load_dwordx2("s[10:11]", "s[0:1]", 64)
    decode_7x32(a)
    a.v_and_b32("v1", 63, "v0")
    a.v_and_b32("v2", 15, "v0")
    a.v_bfe_u32("v3", "v0", 4, 2)
    a.v_lshrrev_b32("v5", 6, "v0")
    a.v_readfirstlane_b32("s28", "v5")
    a.s_waitcnt(mods="lgkmcnt(0)")
    ws_srd(a, 12, 36)
    srd(a, 16, 38, WO_BYTES)
    srd(a, 20, 8, X_BYTES)
    srd(a, 24, 10, OUT_BYTES)
    a.s_add_u32("s50", "s36", WS_SEL)
    a.s_addc_u32("s51", "s37", 0)
    a.s_load_dwordx2("s[40:41]", "s[50:51]", 0)
    stamp(a, 0)
    a.v_lshrrev_b32("v7", 3, "v0")
    a.v_and_b32("v8", 7, "v0")
    a.v_mul_u32_u24("v9", 896, "v7")
    a.v_lshl_add_u32("v9", "v8", 4, "v9")
    a.s_lshl_b32("s33", "s2", 7)
    for i in range(14):
        a.s_add_u32("s34", "s33", 28672 * i)
        a.buffer_load_dwordx4(vr(72 + 4 * i, 4), "v9", "s[16:19]", "s34", mods="offen")
    stamp(a, 5)
    a.s_lshl_b32("s29", "s3", 6)
    a.s_lshl_b32("s30", "s28", 4)
    a.s_add_u32("s29", "s29", "s30")
    a.v_add_u32("v6", "s29", "v2")
    a.s_movk_i32("s31", 896)
    a.v_mul_lo_u32("v4", "v6", "s31")
    a.v_lshl_add_u32("v4", "v3", 3, "v4")
    a.s_mov_b32("s32", WS_O)
    for t in range(14):
        a.buffer_load_dwordx2(vr(16 + 4 * t, 2), "v4", "s[12:15]", "s32", mods="offen offset:%d" % (64 * t))
        a.buffer_load_dwordx2(vr(18 + 4 * t, 2), "v4", "s[12:15]", "s32", mods="offen offset:%d" % (64 * t + 32))
    stamp(a, 6)
    a.s_lshl_b32("s43", "s2", 7)
    a.v_add_u32("v10", "s43", "v4")
    for nb in range(4):
        a.buffer_load_dwordx2(vr(160 + 2 * nb, 2), "v10", "s[20:23]", 0, mods="offen offset:%d" % (32 * nb))
    a.v_lshlrev_b32("v11", 3, "v6")
    a.s_mov_b32("s45", WS_STATS)
    a.buffer_load_dwordx2("v[168:169]", "v11", "s[12:15]", "s45", mods="offen")
    if STAMPS:
        a.s_waitcnt(mods="vmcnt(33)")
    stamp(a, 7)
    a.v_mul_u32_u24("v11", SW3, "v7")
    a.v_lshl_add_u32("v11", "v8", 4, "v11")
    a.v_add_u32("v12", 7 * 32 * SW3, "v11")
    for i in range(14):
        a.ds_write_b128("v11" if i < 7 else "v12", vr(72 + 4 * i, 4), mods="offset:%d" % (32 * SW3 * (i % 7)))
    a.v_bfe_u32("v5", "v0", 2, 4)
    a.v_mul_u32_u24("v5", SW3, "v5")
    a.v_and_b32("v7", 3, "v0")
    a.v_lshl_add_u32("v5", "v7", 3, "v5")
    a.v_add_u32("v13", 7 * 32 * SW3, "v5")
    ACC = 136
    for i in range(16):
        a.v_mov_b32(vr(ACC + i), 0)
    a.s_waitcnt(mods="lgkmcnt(0)")
    stamp(a, 1)
    a.s_barrier()
    stamp(a, 2)
    BF = 72
    def breads(t):
        for nb in range(4):
            for h in range(2):
                a.ds_read_b64_tr_b16(vr(BF + 16 * (t % 4) + 4 * nb + 2 * h, 2), "v5" if t < 7 else "v13",
                                     mods="offset:%d" % ((32 * (t % 7) + 16 * h) * SW3 + 32 * nb))
    breads(0); breads(1); breads(2)
    for t in range(14):
        if t + 3 < 14:
            breads(t + 3)
        for nb in range(4):
            acc = vr(ACC + 4 * nb, 4)
            a.v_mfma_f32_16x16x32_bf16(acc, vr(BF + 16 * (t % 4) + 4 * nb, 4), vr(16 + 4 * t, 4), acc)
    stamp(a, 3)
    a.v_cmp_ne_u32("vcc", "s40", "v6")
    a.v_cmp_ne_u32("s[46:47]", "s41", "v6")
    a.s_and_b64("vcc", "vcc", "s[46:47]")
    a.s_and_saveexec_b64("s[48:49]", "vcc")
    for nb in range(4):
        acc = ACC + 4 * nb
        xr = 160 + 2 * nb
        a.v_lshlrev_b32("v172", 16, vr(xr))
        a.v_and_b32("v173", "0xffff0000", vr(xr))
        a.v_lshlrev_b32("v174", 16, vr(xr + 1))
        a.v_and_b32("v175", "0xffff0000", vr(xr + 1))
        for r in range(4):
            final_combine(a, 176 + r, 172 + r, acc + r, 168, 169, 180)
        a.v_cvt_pk_bf16_f32("v182", "v176", "v177")
        a.v_cvt_pk_bf16_f32("v183", "v178", "v179")
        a.buffer_store_dwordx2("v[182:183]", "v10", "s[24:27]", 0, mods="offen offset:%d" % (32 * nb))
    a.s_mov_b64("exec", "s[48:49]")
    stamp(a, 4)
    if STAMPS:
        a.raw("    s_mul_i32 s57, s3, 7")
        a.raw("    s_add_u32 s57, s57, s2")
    stamp_flush(a, 8, "s57", "s[12:15]", 0x7a0000, "k3")
    a.s_endpgm()
    a.label("k3_ffn")
    a.s_sub_u32("s3", "s2", 224)
    a.s_cmp_ge_u32("s3", 28)
    a.s_cbranch_scc1("k3_done")
    a.s_load_dwordx2("s[4:5]", "s[0:1]", 80)
    a.s_load_dwordx2("s[6:7]", "s[0:1]", 16)
    a.s_load_dwordx2("s[8:9]", "s[0:1]", 0)
    a.s_load_dwordx2("s[10:11]", "s[0:1]", 64)
    a.s_load_dwordx2("s[36:37]", "s[0:1]", 56)
    a.v_and_b32("v1", 1, "v0")
    a.v_lshrrev_b32("v2", 1, "v0")
    a.s_waitcnt(mods="lgkmcnt(0)")
    ws_srd(a, 12, 4)
    srd(a, 16, 6, WO_BYTES)
    srd(a, 20, 8, X_BYTES)
    srd(a, 24, 10, OUT_BYTES)
    srd(a, 28, 36, WG_BYTES)
    a.s_add_u32("s50", "s4", WS_SEL)
    a.s_addc_u32("s51", "s5", 0)
    a.s_load_dwordx4("s[40:43]", "s[50:51]", 0)
    a.v_mul_u32_u24("v3", 896, "v2")
    a.v_lshl_add_u32("v3", "v1", 4, "v3")
    a.s_lshl_b32("s33", "s3", 5)
    for it in range(14):
        a.s_add_u32("s34", "s33", it * 128 * 896)
        a.buffer_load_dwordx4(vr(112 + 4 * it, 4), "v3", "s[28:31]", "s34", mods="offen")
    for it in range(4):
        a.s_add_u32("s34", "s33", it * 128 * 896)
        a.buffer_load_dwordx4(vr(168 + 4 * it, 4), "v3", "s[16:19]", "s34", mods="offen")
    a.v_lshlrev_b32("v4", 1, "v2")
    a.s_mov_b32("s35", WS_H)
    a.s_add_u32("s38", "s35", 3584)
    for it in range(14):
        a.buffer_load_ushort(vr(32 + it), "v4", "s[12:15]", "s35", mods="offen offset:%d" % (256 * it))
        a.buffer_load_ushort(vr(46 + it), "v4", "s[12:15]", "s38", mods="offen offset:%d" % (256 * it))
    a.s_mul_i32("s44", "s40", 896)
    a.s_add_u32("s44", "s44", WS_O)
    a.s_mul_i32("s45", "s41", 896)
    a.s_add_u32("s45", "s45", WS_O)
    for it in range(4):
        a.buffer_load_ushort(vr(60 + it), "v4", "s[12:15]", "s44", mods="offen offset:%d" % (256 * it))
        a.buffer_load_ushort(vr(64 + it), "v4", "s[12:15]", "s45", mods="offen offset:%d" % (256 * it))
    ACC = 72
    for i in range(32):
        a.v_mov_b32(vr(ACC + i), 0)
    for i in range(32, 68):
        a.v_lshlrev_b32(vr(i), 16, vr(i))
    for (kind, nit, wbase, hb) in ((0, 14, 112, (32, 46)), (1, 4, 168, (60, 64))):
        for it in range(nit):
            for q in range(4):
                w = vr(wbase + 4 * it + q)
                a.v_lshlrev_b32("v4", 16, w)
                a.v_and_b32("v5", "0xffff0000", w)
                for tok in range(2):
                    hv = vr(hb[tok] + it)
                    a.v_fmac_f32(vr(ACC + 16 * kind + 8 * tok + 2 * q), hv, "v4")
                    a.v_fmac_f32(vr(ACC + 16 * kind + 8 * tok + 2 * q + 1), hv, "v5")
    a.v_lshlrev_b32("v4", 2, "v0")
    for i in range(32):
        a.ds_write_b32("v4", vr(ACC + i), mods="offset:%d" % (1024 * i))
    a.s_waitcnt(mods="lgkmcnt(0)")
    a.s_barrier()
    SUMS = 32768
    a.v_and_b32("v6", 63, "v0")
    a.v_lshrrev_b32("v5", 1, "v6")
    a.v_lshlrev_b32("v5", 10, "v5")
    a.v_lshl_add_u32("v5", "v1", 2, "v5")
    a.v_lshrrev_b32("v7", 6, "v0")
    a.v_lshl_add_u32("v5", "v7", 8, "v5")
    for kg in range(32):
        a.ds_read_b32(vr(112 + kg), "v5", mods="offset:%d" % (8 * kg))
    a.v_add_f32("v6", "v112", "v113")
    for kg in range(2, 32):
        a.v_add_f32("v6", "v6", vr(112 + kg))
    a.v_add_u32("v7", SUMS, "v4")
    a.ds_write_b32("v7", "v6")
    a.s_waitcnt(mods="lgkmcnt(0)")
    a.s_barrier()
    a.v_cmp_gt_u32("vcc", 32, "v0")
    a.s_and_saveexec_b64("s[46:47]", "vcc")
    a.s_cbranch_execz("k3_done")
    for p in range(4):
        a.ds_read_b32(vr(112 + p), "v7", mods="offset:%d" % (256 * p))
        a.ds_read_b32(vr(116 + p), "v7", mods="offset:%d" % (256 * p + 128))
    a.v_add_f32("v8", "v112", "v113")
    a.v_add_f32("v8", "v8", "v114")
    a.v_add_f32("v8", "v8", "v115")
    a.v_add_f32("v9", "v116", "v117")
    a.v_add_f32("v9", "v9", "v118")
    a.v_add_f32("v9", "v9", "v119")
    a.v_lshrrev_b32("v10", 4, "v0")
    a.v_bfe_u32("v11", "v0", 1, 3)
    a.v_lshl_add_u32("v11", "v1", 3, "v11")
    a.s_lshl_b32("s48", "s3", 4)
    a.v_add_u32("v11", "s48", "v11")
    a.v_cmp_eq_u32("vcc", 0, "v10")
    a.v_mov_b32("v12", "s41")
    a.v_mov_b32("v13", "s40")
    a.v_cndmask_b32("v12", "v12", "v13", "vcc")
    a.v_mov_b32("v13", "s43")
    a.v_mov_b32("v14", "s42")
    a.v_cndmask_b32("v13", "v13", "v14", "vcc")
    a.v_mul_u32_u24("v14", 896, "v12")
    a.v_lshl_add_u32("v14", "v11", 1, "v14")
    a.buffer_load_ushort("v15", "v14", "s[20:23]", 0, mods="offen")
    a.v_lshlrev_b32("v16", 3, "v12")
    a.s_mov_b32("s49", WS_STATS)
    a.buffer_load_dwordx2("v[18:19]", "v16", "s[12:15]", "s49", mods="offen")
    a.v_lshlrev_b32("v15", 16, "v15")
    rne(a, 8, 8)
    a.v_mul_f32("v8", "v8", "v13")
    rne(a, 8, 8)
    final_combine(a, 20, 15, 9, 18, 19, 21, 8)
    a.v_cvt_pk_bf16_f32("v20", "v20", "v20")
    a.buffer_store_short("v20", "v14", "s[24:27]", 0, mods="offen")
    a.label("k3_done")
    a.s_endpgm()
    return a, 448 * SW3, 184


KD = """.section .rodata,"a"
.p2align 6
.amdhsa_kernel {name}
  .amdhsa_next_free_vgpr {vgpr}
  .amdhsa_next_free_sgpr 96
  .amdhsa_accum_offset {acc}
  .amdhsa_group_segment_fixed_size 0
  .amdhsa_kernarg_size 88
  .amdhsa_user_sgpr_count 2
  .amdhsa_user_sgpr_kernarg_segment_ptr 1
  .amdhsa_system_sgpr_workgroup_id_x 1
.end_amdhsa_kernel
"""
HEADER = """; LN + sliding-window attention + MoD SwiGLU FFN, three launches (generated by dev/gen2.py)
"""


def build(kernels):
    out = [HEADER]
    for (name, a, lds, grid, block, vgpr) in kernels:
        out.append("; @launch kernel=%s grid=(%d,1,1) block=(%d,1,1) lds=%d\n" % (name, grid, block, lds))
    out.append('.amdgcn_target "amdgcn-amd-amdhsa--gfx950"\n')
    for (name, a, lds, grid, block, vgpr) in kernels:
        out.append(".text\n.globl %s\n.p2align 8\n.type %s,@function\n" % (name, name))
        out.append(a.finalize())
        out.append(KD.format(name=name, vgpr=vgpr, acc=(vgpr + 3) // 4 * 4))
    return "".join(out)


if __name__ == "__main__":
    if len(sys.argv) > 2 and sys.argv[2] == "stamps":
        STAMPS = True
    k1, l1, v1 = gen_k1()
    k2, l2, v2 = gen_k2()
    k3, l3, v3 = gen_k3()
    ks = [("k1_kernel", k1, l1, 224, 256, v1), ("k2_kernel", k2, l2, 256 + NF1, 512, v2), ("k3_kernel", k3, l3, 224 + 28, 256, v3)]
    open(sys.argv[1] if len(sys.argv) > 1 else "out.s", "w").write(build(ks))
```

```python
import sys, struct, math
from asmgen import Asm, vr, sr

S = 2048; D = 448; NQKV = 1344; F = 1792
WS_QKV = 0
WS_STATS = 0x540000
WS_R = 0x544000
WS_O = 0x548000
WS_H = 0x708000
WS_SEL = 0x70A000
WS_END = 0x70B000
X_BYTES = S * D * 2
WQKV_BYTES = D * NQKV * 2
WO_BYTES = D * D * 2
WG_BYTES = D * F * 2
OUT_BYTES = S * D * 2
SA = 912
NEG = "0xf149f2ca"
LOG2E = 1.4426950408889634
NF1 = 112
STAMPS = False


def f32hex(x):
    return "0x%08x" % struct.unpack("<I", struct.pack("<f", x))[0]


def stamp(a, i):
    if not STAMPS:
        return
    a.raw("    s_memtime s[60:61]")
    a.raw("    s_waitcnt lgkmcnt(0)")
    a.raw("    s_mov_b32 s%d, s60" % (64 + i))


def stamp_flush(a, n, wgreg, srdname, base, tag):
    if not STAMPS:
        return
    a.raw("    v_cmp_eq_u32 vcc, 0, v0")
    a.raw("    s_and_saveexec_b64 s[62:63], vcc")
    a.raw("    s_cbranch_execz stamp_skip_%s" % tag)
    a.raw("    s_lshl_b32 s58, %s, 6" % wgreg)
    a.raw("    s_add_u32 s58, s58, 0x%x" % base)
    for i in range(n):
        a.raw("    v_mov_b32 v100, s%d" % (64 + i))
        a.raw("    v_mov_b32 v101, %d" % (4 * i))
        a.raw("    buffer_store_dword v100, v101, %s, s58 offen" % srdname)
    a.raw("stamp_skip_%s:" % tag)
    a.raw("    s_mov_b64 exec, s[62:63]")


def srd(a, sb, sp, size):
    a.s_mov_b32(sr(sb), sr(sp))
    a.s_mov_b32(sr(sb + 1), sr(sp + 1))
    a.s_mov_b32(sr(sb + 2), "0x%x" % size)
    a.s_mov_b32(sr(sb + 3), "0x00020000")


def ws_srd(a, sb, sp):
    srd(a, sb, sp, WS_END + (0x100000 if STAMPS else 0))


def rne(a, vd, vs):
    a.v_cvt_pk_bf16_f32(vr(vd), vr(vs), vr(vs))
    a.v_lshlrev_b32(vr(vd), 16, vr(vd))


def xlane(a, op, v, vtmp, va16, va32):
    a.ds_bpermute_b32(vr(vtmp), vr(va16), vr(v))
    a.I(op, vr(v), vr(v), vr(vtmp))
    a.ds_bpermute_b32(vr(vtmp), vr(va32), vr(v))
    a.I(op, vr(v), vr(v), vr(vtmp))


def decode_7x32(a):
    a.s_and_b32("s3", "s2", 7)
    a.s_lshr_b32("s4", "s2", 3)
    a.s_mul_i32("s5", "s4", 37)
    a.s_lshr_b32("s5", "s5", 8)
    a.s_mul_i32("s6", "s5", 7)
    a.s_sub_u32("s2", "s4", "s6")
    a.s_lshl_b32("s3", "s3", 2)
    a.s_add_u32("s3", "s3", "s5")


def gen_k1():
    a = Asm()
    SW = 416
    WBUF = 64 * SW
    A_BASE = 3 * WBUF
    a.label("k1_kernel")
    a.s_cmp_ge_u32("s2", 224)
    a.s_cbranch_scc1("k1_done")
    a.s_load_dwordx4("s[36:39]", "s[0:1]", 0)
    a.s_load_dwordx2("s[8:9]", "s[0:1]", 32)
    a.s_load_dwordx2("s[10:11]", "s[0:1]", 80)
    decode_7x32(a)
    a.v_and_b32("v1", 63, "v0")
    a.v_and_b32("v2", 15, "v0")
    a.v_bfe_u32("v3", "v0", 4, 2)
    a.v_lshrrev_b32("v5", 6, "v0")
    a.v_readfirstlane_b32("s28", "v5")
    a.s_waitcnt(mods="lgkmcnt(0)")
    srd(a, 12, 36, X_BYTES)
    srd(a, 16, 38, WQKV_BYTES)
    ws_srd(a, 20, 10)
    srd(a, 24, 8, D * 2)
    stamp(a, 0)
    a.s_lshl_b32("s29", "s3", 6)
    a.s_lshl_b32("s30", "s28", 4)
    a.s_add_u32("s29", "s29", "s30")
    a.v_add_u32("v6", "s29", "v2")
    a.s_movk_i32("s31", 896)
    a.v_mul_lo_u32("v4", "v6", "s31")
    a.v_lshl_add_u32("v4", "v3", 4, "v4")
    for t in range(14):
        a.buffer_load_dwordx4(vr(16 + 4 * t, 4), "v4", "s[12:15]", 0, mods="offen offset:%d" % (64 * t))
    a.v_lshrrev_b32("v7", 3, "v0")
    a.v_and_b32("v8", 7, "v0")
    a.s_movk_i32("s32", 2688)
    a.v_mul_lo_u32("v9", "v7", "s32")
    a.v_lshl_add_u32("v9", "v8", 4, "v9")
    a.v_add_u32("v10", "0x15000", "v9")
    a.s_mul_i32("s33", "s2", 384)
    a.v_mul_u32_u24("v11", SW, "v7")
    a.v_lshl_add_u32("v11", "v8", 4, "v11")
    WR = (184, 208)

    def w_loads(ch):
        base = WR[ch % 2]
        a.s_add_u32("s34", "s33", ch * 64 * 2688)
        for i in range(2):
            for j in range(3):
                a.buffer_load_dwordx4(vr(base + 4 * (3 * i + j), 4), "v9" if i == 0 else "v10", "s[16:19]", "s34",
                                      mods="offen offset:%d" % (128 * j))

    def w_writes(ch):
        base = WR[ch % 2]
        for i in range(2):
            for j in range(3):
                a.ds_write_b128("v11" if ch % 3 < 2 else "v7", vr(base + 4 * (3 * i + j), 4),
                                mods="offset:%d" % ((ch % 3 % 2) * WBUF + 32 * i * SW + 128 * j))

    w_loads(0)
    w_loads(1)
    a.v_xor_b32("v12", 16, "v1")
    a.v_lshlrev_b32("v12", 2, "v12")
    a.v_xor_b32("v13", 32, "v1")
    a.v_lshlrev_b32("v13", 2, "v13")
    if STAMPS:
        a.s_waitcnt(mods="vmcnt(12)")
    stamp(a, 1)
    for i in range(56):
        a.v_lshlrev_b32(vr(72 + 2 * i), 16, vr(16 + i))
        a.v_and_b32(vr(73 + 2 * i), "0xffff0000", vr(16 + i))
    a.v_pk_add_f32("v[14:15]", "v[72:73]", "v[74:75]")
    for i in range(2, 56):
        a.v_pk_add_f32("v[14:15]", "v[14:15]", vr(72 + 2 * i, 2))
    a.v_add_f32("v14", "v14", "v15")
    xlane(a, "v_add_f32", 14, 15, 12, 13)
    a.v_mul_f32("v14", "0x3b124925", "v14")
    a.v_sub_f32("v232", 0, "v14")
    a.v_mov_b32("v233", "v232")
    a.v_mov_b32("v234", 0)
    a.v_mov_b32("v235", 0)
    for i in range(56):
        a.v_pk_add_f32("v[236:237]", vr(72 + 2 * i, 2), "v[232:233]")
        a.v_pk_fma_f32("v[234:235]", "v[236:237]", "v[236:237]", "v[234:235]")
    a.v_add_f32("v234", "v234", "v235")
    xlane(a, "v_add_f32", 234, 15, 12, 13)
    a.v_mul_f32("v234", "0x3b124925", "v234")
    rne(a, 14, 14)
    rne(a, 234, 234)
    a.v_add_f32("v234", "0x3727c5ac", "v234")
    rne(a, 234, 234)
    a.v_sqrt_f32("v234", "v234")
    rne(a, 234, 234)
    a.v_rcp_f32("v234", "v234")
    a.v_mov_b32("v235", "v234")
    a.v_sub_f32("v232", 0, "v14")
    a.v_mov_b32("v233", "v232")
    for i in range(56):
        p = vr(72 + 2 * i, 2)
        a.v_pk_add_f32(p, p, "v[232:233]")
        a.v_cvt_pk_bf16_f32(vr(16 + i), vr(72 + 2 * i), vr(73 + 2 * i))
        a.v_lshlrev_b32(vr(72 + 2 * i), 16, vr(16 + i))
        a.v_and_b32(vr(73 + 2 * i), "0xffff0000", vr(16 + i))
        a.v_pk_mul_f32(p, p, "v[234:235]")
        a.v_cvt_pk_bf16_f32(vr(16 + i), vr(72 + 2 * i), vr(73 + 2 * i))
    stamp(a, 2)
    a.s_lshl_b32("s35", "s28", 8)
    a.s_add_u32("s35", "s35", A_BASE)
    a.v_lshlrev_b32("v15", 4, "v2")
    a.v_add_u32("v15", "s35", "v15")
    a.v_and_b32("v236", 1, "v3")
    a.v_lshl_add_u32("v15", "v236", 11, "v15")
    a.v_lshrrev_b32("v236", 1, "v3")
    a.v_lshl_add_u32("v15", "v236", 3, "v15")
    for t in range(14):
        a.ds_write2st64_b64("v15", vr(16 + 4 * t, 2), vr(18 + 4 * t, 2), mods="offset0:%d offset1:%d" % (8 * t, 8 * t + 2))
    w_writes(0)
    w_loads(2)
    w_writes(1)
    w_loads(3)
    a.s_cmp_lg_u32("s2", 0)
    a.s_cbranch_scc1("k1_skip_r")
    a.v_lshlrev_b32("v236", 4, "v3")
    for t in range(14):
        a.buffer_load_dwordx4(vr(120 + 4 * t, 4), "v236", "s[24:27]", 0, mods="offen offset:%d" % (64 * t))
    a.v_mov_b32("v237", 0)
    for i in range(56):
        a.v_dot2_f32_bf16("v237", vr(16 + i), vr(120 + i), "v237")
    xlane(a, "v_add_f32", 237, 238, 12, 13)
    rne(a, 237, 237)
    a.v_cmp_gt_u32("vcc", 16, "v1")
    a.s_and_saveexec_b64("s[40:41]", "vcc")
    a.v_lshlrev_b32("v238", 2, "v6")
    a.v_add_u32("v238", "0x%x" % WS_R, "v238")
    a.buffer_store_dword("v237", "v238", "s[20:23]", 0, mods="offen")
    a.v_lshlrev_b32("v238", 3, "v6")
    a.v_add_u32("v238", "0x%x" % WS_STATS, "v238")
    a.v_mov_b32("v236", "v14")
    a.v_mov_b32("v237", "v234")
    a.buffer_store_dwordx2("v[236:237]", "v238", "s[20:23]", 0, mods="offen")
    a.s_mov_b64("exec", "s[40:41]")
    a.label("k1_skip_r")
    a.v_lshlrev_b32("v4", 4, "v2")
    a.v_lshl_add_u32("v4", "v3", 10, "v4")
    a.v_add_u32("v4", A_BASE, "v4")
    a.v_bfe_u32("v5", "v0", 2, 4)
    a.v_mul_u32_u24("v5", SW, "v5")
    a.v_and_b32("v7", 3, "v0")
    a.v_lshl_add_u32("v5", "v7", 3, "v5")
    a.s_mul_i32("s35", "s28", 96)
    a.v_add_u32("v5", "s35", "v5")
    a.v_add_u32("v6", 2 * WBUF, "v5")
    a.v_add_u32("v7", 2 * WBUF, "v11")
    ACC = 72
    for i in range(48):
        a.v_mov_b32(vr(ACC + i), 0)
    a.s_waitcnt(mods="lgkmcnt(0)")
    stamp(a, 3)
    a.s_barrier()
    stamp(a, 4)
    AF, BF = 120, 152

    def frag_reads(step):
        ch, tl = step // 2, step % 2
        st = step % 2
        for mb in range(4):
            a.ds_read_b128(vr(AF + 16 * st + 4 * mb, 4), "v4", mods="offset:%d" % (4096 * step + mb * 256))
        for nb in range(3):
            for h in range(2):
                a.ds_read_b64_tr_b16(vr(BF + 12 * st + 4 * nb + 2 * h, 2), "v5" if ch % 3 < 2 else "v6",
                                     mods="offset:%d" % ((ch % 3 % 2) * WBUF + (32 * tl + 16 * h) * SW + 32 * nb))

    def mfmas(step):
        st = step % 2
        for mb in range(4):
            for nb in range(3):
                acc = vr(ACC + 4 * (3 * mb + nb), 4)
                a.v_mfma_f32_16x16x32_bf16(acc, vr(BF + 12 * st + 4 * nb, 4), vr(AF + 16 * st + 4 * mb, 4), acc)

    frag_reads(0)
    for ch in range(7):
        frag_reads(2 * ch + 1)
        mfmas(2 * ch)
        if ch + 2 < 7:
            w_writes(ch + 2)
            if ch + 4 < 7:
                w_loads(ch + 4)
        if ch + 1 < 7:
            frag_reads(2 * ch + 2)
        mfmas(2 * ch + 1)
        if ch + 1 < 7:
            a.s_waitcnt(mods="lgkmcnt(0)")
            a.s_barrier()
    stamp(a, 5)
    a.s_mul_i32("s35", "s2", 192)
    a.s_mul_i32("s36", "s28", 48)
    a.s_add_u32("s35", "s35", "s36")
    a.v_lshlrev_b32("v5", 2, "v3")
    a.v_add_u32("v5", "s35", "v5")
    a.s_lshl_b32("s36", "s3", 6)
    a.v_add_u32("v7", "s36", "v2")
    a.v_mul_u32_u24("v7", 56, "v7")
    a.s_mov_b32("s37", 9363)
    a.s_mov_b32("s38", 114632)
    for nb in range(3):
        a.v_add_u32("v8", 16 * nb, "v5")
        a.v_mul_lo_u32("v9", "v8", "s37")
        a.v_lshrrev_b32("v9", 18, "v9")
        a.v_mul_lo_u32("v9", "v9", "s38")
        a.v_lshl_add_u32("v9", "v8", 1, "v9")
        a.v_add_u32(vr(10 + nb), "v9", "v7")
    for mb in range(4):
        for nb in range(3):
            acc = ACC + 4 * (3 * mb + nb)
            a.v_cvt_pk_bf16_f32(vr(acc), vr(acc), vr(acc + 1))
            a.v_cvt_pk_bf16_f32(vr(acc + 1), vr(acc + 2), vr(acc + 3))
            a.buffer_store_dwordx2(vr(acc, 2), vr(10 + nb), "s[20:23]", 0, mods="offen offset:%d" % (896 * mb))
    stamp(a, 6)
    if STAMPS:
        a.raw("    s_mul_i32 s57, s3, 7")
        a.raw("    s_add_u32 s57, s57, s2")
    stamp_flush(a, 7, "s57", "s[20:23]", 0x780000, "k1")
    a.label("k1_done")
    a.s_endpgm()
    return a, A_BASE + 57344, 240


def gen_k2():
    a = Asm()
    HS = 114688
    VB = 24576
    a.label("k2_kernel")
    a.s_cmp_ge_u32("s2", 256)
    a.s_cbranch_scc1("k2_ffn")
    a.s_load_dwordx2("s[4:5]", "s[0:1]", 80)
    a.v_and_b32("v1", 63, "v0")
    a.v_and_b32("v2", 15, "v0")
    a.v_bfe_u32("v3", "v0", 4, 2)
    a.v_lshrrev_b32("v5", 6, "v0")
    a.v_readfirstlane_b32("s28", "v5")
    a.s_and_b32("s29", "s2", 7)
    a.s_lshl_b32("s29", "s29", 1)
    a.s_lshr_b32("s30", "s2", 3)
    a.s_lshr_b32("s31", "s30", 4)
    a.s_add_u32("s29", "s29", "s31")
    a.s_and_b32("s30", "s30", 15)
    a.s_waitcnt(mods="lgkmcnt(0)")
    ws_srd(a, 8, 4)
    stamp(a, 0)
    a.s_mul_i32("s31", "s29", HS)
    a.s_mul_i32("s32", "s30", 128 * 56)
    a.s_add_u32("s31", "s31", "s32")
    a.s_add_u32("s33", "s31", 16 * HS - 256 * 56)
    a.s_add_u32("s34", "s33", 16 * HS)
    a.v_lshlrev_b32("v4", 4, "v0")
    a.v_add_u32("v5", 8192, "v4")
    a.v_add_u32("v6", 16384, "v4")
    SR = 36
    for i, vo in enumerate(("v4", "v5", "v6")):
        a.buffer_load_dwordx4(vr(SR + 4 * i, 4), vo, "s[8:11]", "s33", mods="offen")
    for i, vo in enumerate(("v4", "v5", "v6")):
        a.buffer_load_dwordx4(vr(SR + 12 + 4 * i, 4), vo, "s[8:11]", "s34", mods="offen")
    a.s_lshl_b32("s35", "s28", 4)
    a.v_add_u32("v7", "s35", "v2")
    a.v_mul_u32_u24("v7", 56, "v7")
    a.v_lshl_add_u32("v7", "v3", 4, "v7")
    QF = 16
    a.buffer_load_dwordx2(vr(QF, 2), "v7", "s[8:11]", "s31", mods="offen")
    a.buffer_load_dwordx2(vr(QF + 2, 2), "v7", "s[8:11]", "s31", mods="offen offset:8")
    a.s_lshl_b32("s36", "s30", 3)
    a.s_add_u32("s36", "s36", "s28")
    a.s_sub_i32("s36", 16, "s36")
    a.s_max_i32("s36", "s36", 0)
    a.s_mov_b32("s37", NEG)
    a.v_lshlrev_b32("v8", 2, "v3")
    a.v_sub_u32("v8", "v8", "v2")
    a.s_cmp_gt_i32("s36", 0)
    a.s_cselect_b32("s38", -1000, 0)
    a.v_add_u32("v9", "s38", "v8")
    a.v_mov_b32("v10", "s37")
    for r in range(4):
        a.v_cmp_lt_i32("vcc", -r, "v9")
        a.v_cndmask_b32(vr(20 + r), "v10", 0, "vcc")
    for r in range(4):
        a.v_cmp_ge_i32("vcc", -r, "v8")
        a.v_cndmask_b32(vr(24 + r), "v10", 0, "vcc")
    a.v_cmp_eq_u32("vcc", 3, "v3")
    a.v_cndmask_b32(vr(QF + 2), vr(QF + 2), 0, "vcc")
    a.v_cndmask_b32(vr(QF + 3), vr(QF + 3), 0, "vcc")
    for i in range(3):
        a.ds_write_b128("v4", vr(SR + 4 * i, 4), mods="offset:%d" % (8192 * i))
    for i in range(3):
        a.ds_write_b128("v4", vr(SR + 12 + 4 * i, 4), mods="offset:%d" % (VB + 8192 * i))
    a.s_waitcnt(mods="lgkmcnt(0)")
    stamp(a, 1)
    a.s_barrier()
    stamp(a, 2)
    KF = 104
    def kread(b):
        a.ds_read_b64(vr(KF + 4 * (b % 6), 2), "v7", mods="offset:%d" % (896 * b))
        a.ds_read_b64(vr(KF + 4 * (b % 6) + 2, 2), "v7", mods="offset:%d" % (896 * b + 8))
    for b in range(6):
        kread(b)
    for b in range(17):
        if b == 0:
            cop = "v[20:23]"
        elif b == 16:
            cop = "v[24:27]"
        else:
            a.s_cmp_gt_i32("s36", b)
            a.s_cselect_b32("s38", "s37", 0)
            for r in range(4):
                a.v_mov_b32(vr(28 + 4 * (b % 2) + r), "s38")
            cop = vr(28 + 4 * (b % 2), 4)
        a.v_mfma_f32_16x16x32_bf16(vr(SR + 4 * b, 4), vr(KF + 4 * (b % 6), 4), vr(QF, 4), cop)
        if b + 6 < 17:
            kread(b + 6)
    if STAMPS:
        a.v_mov_b32("v12", vr(SR + 64))
    stamp(a, 3)
    a.v_bfe_u32("v11", "v0", 2, 4)
    a.v_add_u32("v11", "s35", "v11")
    a.v_mul_u32_u24("v11", 56, "v11")
    a.v_and_b32("v12", 3, "v0")
    a.v_lshl_add_u32("v11", "v12", 3, "v11")
    a.v_add_u32("v11", VB, "v11")
    a.v_max3_f32("v12", vr(SR), vr(SR + 1), vr(SR + 2))
    i = 3
    while i + 1 < 68:
        a.v_max3_f32("v12", "v12", vr(SR + i), vr(SR + i + 1))
        i += 2
    if i < 68:
        a.v_max_f32("v12", "v12", vr(SR + i))
    a.v_xor_b32("v13", 16, "v1")
    a.v_lshlrev_b32("v13", 2, "v13")
    a.v_xor_b32("v14", 32, "v1")
    a.v_lshlrev_b32("v14", 2, "v14")
    xlane(a, "v_max_f32", 12, 15, 13, 14)
    c1 = (28 ** -0.5) * LOG2E
    a.s_mov_b32("s39", f32hex(c1))
    a.v_mul_f32("v12", "s39", "v12")
    for i in range(68):
        a.v_fma_f32(vr(SR + i), vr(SR + i), "s39", "-v12")
    for i in range(68):
        a.v_exp_f32(vr(SR + i), vr(SR + i))
    a.v_pk_add_f32("v[8:9]", vr(SR, 2), vr(SR + 2, 2))
    for i in range(2, 34):
        a.v_pk_add_f32("v[8:9]", "v[8:9]", vr(SR + 2 * i, 2))
    a.v_add_f32("v8", "v8", "v9")
    for i in range(34):
        a.v_cvt_pk_bf16_f32(vr(SR + i), vr(SR + 2 * i), vr(SR + 2 * i + 1))
    PK = SR
    VF = 70
    xlane(a, "v_add_f32", 8, 15, 13, 14)
    a.v_rcp_f32("v8", "v8")
    OA = 28
    for db in range(2):
        for j in range(8):
            for h in range(2):
                a.ds_read_b64_tr_b16(vr(VF + 4 * j + 2 * h, 2), "v11", mods="offset:%d" % ((32 * j + 16 * h) * 56 + 32 * db))
        a.ds_read_b64_tr_b16(vr(VF + 32, 2), "v11", mods="offset:%d" % (256 * 56 + 32 * db))
        for j in range(8):
            a.v_mfma_f32_16x16x32_bf16(vr(OA + 4 * db, 4), vr(VF + 4 * j, 4), vr(PK + 4 * j, 4),
                                       vr(OA + 4 * db, 4) if j > 0 else 0)
        a.v_mfma_f32_16x16x16_bf16(vr(OA + 4 * db, 4), vr(VF + 32, 2), vr(PK + 32, 2), vr(OA + 4 * db, 4))
    stamp(a, 4)
    a.s_lshl_b32("s40", "s30", 7)
    a.s_add_u32("s40", "s40", "s35")
    a.v_add_u32("v4", "s40", "v2")
    a.s_movk_i32("s41", 896)
    a.v_mul_lo_u32("v4", "v4", "s41")
    a.v_lshl_add_u32("v4", "v3", 3, "v4")
    a.s_mul_i32("s42", "s29", 56)
    a.s_add_u32("s42", "s42", WS_O)
    for i in range(8):
        a.v_mul_f32(vr(OA + i), vr(OA + i), "v8")
    a.v_cvt_pk_bf16_f32("v12", vr(OA), vr(OA + 1))
    a.v_cvt_pk_bf16_f32("v13", vr(OA + 2), vr(OA + 3))
    a.v_cvt_pk_bf16_f32("v14", vr(OA + 4), vr(OA + 5))
    a.v_cvt_pk_bf16_f32("v15", vr(OA + 6), vr(OA + 7))
    a.buffer_store_dwordx2("v[12:13]", "v4", "s[8:11]", "s42", mods="offen")
    a.v_cmp_gt_u32("vcc", 48, "v1")
    a.s_and_saveexec_b64("s[44:45]", "vcc")
    a.buffer_store_dwordx2("v[14:15]", "v4", "s[8:11]", "s42", mods="offen offset:32")
    a.s_mov_b64("exec", "s[44:45]")
    stamp(a, 5)
    stamp_flush(a, 6, "s2", "s[8:11]", 0x790000, "k2")
    a.s_endpgm()
    a.label("k2_ffn")
    gen_ffn1(a)
    a.s_endpgm()
    return a, 49152, 128


def sigmoid_bf16(a, vd, vx, vt):
    a.v_mul_f32(vr(vt), f32hex(-LOG2E), vr(vx))
    a.v_exp_f32(vr(vt), vr(vt))
    a.v_add_f32(vr(vt), 1.0, vr(vt))
    a.v_rcp_f32(vr(vt), vr(vt))
    rne(a, vd, vt)


def gen_ffn1(a):
    TOP = 36864
    a.s_sub_u32("s29", "s2", 256)
    a.s_cmp_ge_u32("s29", NF1)
    a.s_cbranch_scc1("k2_done")
    a.s_load_dwordx2("s[4:5]", "s[0:1]", 80)
    a.s_load_dwordx2("s[6:7]", "s[0:1]", 0)
    a.s_load_dwordx4("s[12:15]", "s[0:1]", 40)
    a.v_lshlrev_b32("v4", 4, "v0")
    a.v_mov_b32("v5", TOP)
    a.s_waitcnt(mods="lgkmcnt(0)")
    ws_srd(a, 8, 4)
    srd(a, 16, 6, X_BYTES)
    srd(a, 20, 12, WG_BYTES)
    srd(a, 24, 14, WG_BYTES)
    a.s_mov_b32("s30", WS_R)
    stamp(a, 0)
    a.buffer_load_dwordx4("v[16:19]", "v4", "s[8:11]", "s30", mods="offen")
    a.v_lshrrev_b32("v8", 1, "v0")
    a.s_movk_i32("s33", 3584)
    a.v_mul_lo_u32("v9", "v8", "s33")
    a.v_and_b32("v10", 1, "v0")
    a.v_lshl_add_u32("v9", "v10", 4, "v9")
    a.s_lshl_b32("s34", "s29", 5)
    WB = 96
    for it in range(2):
        a.s_add_u32("s35", "s34", it * 256 * 3584)
        a.buffer_load_dwordx4(vr(WB + 8 * it, 4), "v9", "s[20:23]", "s35", mods="offen")
        a.buffer_load_dwordx4(vr(WB + 4 + 8 * it, 4), "v9", "s[24:27]", "s35", mods="offen")
    a.v_lshlrev_b32("v11", 2, "v0")
    for e in range(4):
        a.v_ashrrev_i32("v9", 31, vr(16 + e))
        a.v_or_b32("v9", "0x80000000", "v9")
        a.v_xor_b32("v9", "v9", vr(16 + e))
        a.v_and_b32("v9", "0xffff0000", "v9")
        a.v_sub_u32("v12", 0xFFFF - e, "v11")
        a.v_or_b32(vr(20 + e), "v9", "v12")
    a.v_max_u32("v14", "v20", "v21")
    a.v_min_u32("v15", "v20", "v21")
    for e in (22, 23):
        a.v_min_u32("v12", "v14", vr(e))
        a.v_max_u32("v14", "v14", vr(e))
        a.v_max_u32("v15", "v15", "v12")
    a.v_and_b32("v13", 63, "v0")
    for m in (1, 2, 4, 8, 16, 32):
        a.v_xor_b32("v12", m, "v13")
        a.v_lshlrev_b32("v12", 2, "v12")
        a.ds_bpermute_b32("v20", "v12", "v14")
        a.ds_bpermute_b32("v21", "v12", "v15")
        a.v_min_u32("v22", "v14", "v20")
        a.v_max_u32("v14", "v14", "v20")
        a.v_max_u32("v15", "v15", "v21")
        a.v_max_u32("v15", "v15", "v22")
    a.v_lshrrev_b32("v12", 6, "v0")
    a.v_lshl_add_u32("v12", "v12", 3, "v5")
    a.ds_write_b64("v12", "v[14:15]")
    a.s_waitcnt(mods="lgkmcnt(0)")
    a.s_barrier()
    for i in range(4):
        a.ds_read_b128(vr(16 + 4 * i, 4), "v5", mods="offset:%d" % (16 * i))
    for i in range(1, 8):
        a.v_min_u32("v12", "v16", vr(16 + 2 * i))
        a.v_max_u32("v16", "v16", vr(16 + 2 * i))
        a.v_max_u32("v17", "v17", vr(17 + 2 * i))
        a.v_max_u32("v17", "v17", "v12")
    a.v_and_b32("v12", "0xffff", "v16")
    a.v_sub_u32("v12", "0xffff", "v12")
    a.v_and_b32("v13", "0xffff", "v17")
    a.v_sub_u32("v13", "0xffff", "v13")
    stamp(a, 1)
    a.s_mov_b32("s31", WS_STATS)
    a.v_lshlrev_b32("v14", 3, "v12")
    a.v_lshlrev_b32("v15", 3, "v13")
    a.buffer_load_dwordx2("v[24:25]", "v14", "s[8:11]", "s31", mods="offen")
    a.buffer_load_dwordx2("v[26:27]", "v15", "s[8:11]", "s31", mods="offen")
    a.v_lshlrev_b32("v14", 2, "v12")
    a.v_lshlrev_b32("v15", 2, "v13")
    a.buffer_load_dword("v28", "v14", "s[8:11]", "s30", mods="offen")
    a.buffer_load_dword("v29", "v15", "s[8:11]", "s30", mods="offen")
    a.s_movk_i32("s32", 896)
    a.v_mul_lo_u32("v14", "v12", "s32")
    a.v_lshl_add_u32("v14", "v8", 1, "v14")
    a.v_mul_lo_u32("v15", "v13", "s32")
    a.v_lshl_add_u32("v15", "v8", 1, "v15")
    for it in range(2):
        a.buffer_load_ushort(vr(16 + it), "v14", "s[16:19]", 0, mods="offen offset:%d" % (512 * it))
        a.buffer_load_ushort(vr(18 + it), "v15", "s[16:19]", 0, mods="offen offset:%d" % (512 * it))
    a.v_lshlrev_b32("v30", 5, "v8")
    a.v_lshl_add_u32("v30", "v10", 4, "v30")
    for it in range(2):
        a.ds_write_b128("v30", vr(WB + 8 * it, 4), mods="offset:%d" % (8192 * it))
        a.ds_write_b128("v30", vr(WB + 4 + 8 * it, 4), mods="offset:%d" % (16384 + 8192 * it))
    for it in range(2):
        for (base, m, rs) in ((16, 24, 25), (18, 26, 27)):
            x = vr(base + it)
            a.v_lshlrev_b32(x, 16, x)
            a.v_sub_f32(x, x, vr(m))
            a.v_cvt_pk_bf16_f32(x, x, x)
            a.v_lshlrev_b32(x, 16, x)
            a.v_mul_f32(x, x, vr(rs))
            a.v_cvt_pk_bf16_f32(x, x, x)
    AB = 32768
    a.v_lshlrev_b32("v31", 1, "v8")
    a.v_add_u32("v31", AB, "v31")
    for it in range(2):
        a.ds_write_b16("v31", vr(16 + it), mods="offset:%d" % (512 * it))
        a.ds_write_b16("v31", vr(18 + it), mods="offset:%d" % (1024 + 512 * it))
    a.s_waitcnt(mods="lgkmcnt(0)")
    stamp(a, 2)
    a.s_barrier()
    a.v_lshrrev_b32("v7", 6, "v0")
    a.v_readfirstlane_b32("s28", "v7")
    a.s_and_b32("s40", "s28", 1)
    a.s_lshr_b32("s41", "s28", 1)
    a.v_and_b32("v21", 15, "v0")
    a.v_bfe_u32("v22", "v0", 4, 2)
    a.v_bfe_u32("v23", "v0", 2, 4)
    a.v_lshlrev_b32("v23", 5, "v23")
    a.v_and_b32("v24", 3, "v0")
    a.v_lshl_add_u32("v23", "v24", 3, "v23")
    a.s_lshl_b32("s42", "s40", 14)
    a.s_lshl_b32("s43", "s41", 10)
    a.s_add_u32("s42", "s42", "s43")
    a.v_add_u32("v23", "s42", "v23")
    a.v_lshlrev_b32("v25", 10, "v21")
    a.v_lshl_add_u32("v25", "v22", 3, "v25")
    a.s_lshl_b32("s43", "s41", 6)
    a.s_add_u32("s43", "s43", AB)
    a.v_add_u32("v25", "s43", "v25")
    for i in range(16):
        a.v_mov_b32(vr(64 + i), 0)
    a.v_cmp_gt_u32("vcc", 2, "v21")
    a.s_and_saveexec_b64("s[36:37]", "vcc")
    for i in range(4):
        a.ds_read_b64(vr(64 + 4 * i, 2), "v25", mods="offset:%d" % (256 * i))
        a.ds_read_b64(vr(66 + 4 * i, 2), "v25", mods="offset:%d" % (256 * i + 32))
    a.s_mov_b64("exec", "s[36:37]")
    for i in range(4):
        a.ds_read_b64_tr_b16(vr(80 + 4 * i, 2), "v23", mods="offset:%d" % (4096 * i))
        a.ds_read_b64_tr_b16(vr(82 + 4 * i, 2), "v23", mods="offset:%d" % (4096 * i + 512))
    for i in range(4):
        a.v_mfma_f32_16x16x32_bf16("v[96:99]", vr(80 + 4 * i, 4), vr(64 + 4 * i, 4), "v[96:99]" if i else 0)
    stamp(a, 3)
    RED = 34816
    a.v_lshlrev_b32("v26", 6, "v21")
    a.v_lshl_add_u32("v26", "v22", 4, "v26")
    a.s_lshl_b32("s43", "s28", 7)
    a.s_add_u32("s43", "s43", RED)
    a.v_add_u32("v26", "s43", "v26")
    a.s_and_saveexec_b64("s[36:37]", "vcc")
    a.ds_write_b128("v26", "v[96:99]")
    a.s_mov_b64("exec", "s[36:37]")
    a.s_waitcnt(mods="lgkmcnt(0)")
    a.s_barrier()
    a.v_cmp_gt_u32("vcc", 32, "v0")
    a.s_and_saveexec_b64("s[36:37]", "vcc")
    a.s_cbranch_execz("k2_f1_skip2")
    a.v_lshrrev_b32("v17", 4, "v0")
    a.v_lshlrev_b32("v18", 2, "v0")
    a.v_add_u32("v18", RED, "v18")
    for w in range(4):
        a.ds_read_b32(vr(64 + w), "v18", mods="offset:%d" % (256 * w))
        a.ds_read_b32(vr(72 + w), "v18", mods="offset:%d" % (256 * w + 128))
    a.v_add_f32("v20", "v64", "v65")
    a.v_add_f32("v21", "v72", "v73")
    for w in range(2, 4):
        a.v_add_f32("v20", "v20", vr(64 + w))
        a.v_add_f32("v21", "v21", vr(72 + w))
    rne(a, 20, 20)
    rne(a, 21, 21)
    a.v_mul_f32("v22", f32hex(-LOG2E), "v20")
    a.v_exp_f32("v22", "v22")
    a.v_add_f32("v22", 1.0, "v22")
    a.v_rcp_f32("v22", "v22")
    a.v_mul_f32("v22", "v22", "v20")
    rne(a, 22, 22)
    a.v_mul_f32("v22", "v22", "v21")
    a.v_cvt_pk_bf16_f32("v22", "v22", "v22")
    a.v_mul_u32_u24("v16", 1792, "v17")
    a.v_and_b32("v17", 15, "v0")
    a.v_add_u32("v16", "v16", "v17")
    a.s_lshl_b32("s38", "s29", 4)
    a.v_add_u32("v16", "s38", "v16")
    a.v_lshlrev_b32("v16", 1, "v16")
    a.s_mov_b32("s39", WS_H)
    a.buffer_store_short("v22", "v16", "s[8:11]", "s39", mods="offen")
    a.label("k2_f1_skip2")
    a.s_mov_b64("exec", "s[36:37]")
    stamp(a, 4)
    stamp_flush(a, 8, "s29", "s[8:11]", 0x7b0000, "f1")
    a.s_cmp_lg_u32("s29", 0)
    a.s_cbranch_scc1("k2_done")
    sigmoid_bf16(a, 28, 28, 16)
    sigmoid_bf16(a, 29, 29, 16)
    a.v_mov_b32("v16", "v12")
    a.v_mov_b32("v17", "v13")
    a.v_mov_b32("v18", "v28")
    a.v_mov_b32("v19", "v29")
    a.v_mov_b32("v20", WS_SEL)
    a.v_cmp_eq_u32("vcc", 0, "v0")
    a.s_and_saveexec_b64("s[36:37]", "vcc")
    a.buffer_store_dwordx4("v[16:19]", "v20", "s[8:11]", 0, mods="offen")
    a.label("k2_done")


def final_combine(a, vout, vx, vattn, vm, vrs, vt, vy2=None):
    rne(a, vattn, vattn)
    a.v_add_f32(vr(vattn), vr(vx), vr(vattn))
    rne(a, vattn, vattn)
    a.v_sub_f32(vr(vt), vr(vx), vr(vm))
    rne(a, vt, vt)
    a.v_mul_f32(vr(vt), vr(vt), vr(vrs))
    rne(a, vt, vt)
    if vy2 is not None:
        a.v_add_f32(vr(vt), vr(vt), vr(vy2))
        rne(a, vt, vt)
    a.v_add_f32(vr(vout), vr(vattn), vr(vt))


def gen_k3():
    a = Asm()
    SW3 = 160
    a.label("k3_kernel")
    a.s_cmp_ge_u32("s2", 224)
    a.s_cbranch_scc1("k3_ffn")
    a.s_load_dwordx2("s[36:37]", "s[0:1]", 80)
    a.s_load_dwordx2("s[38:39]", "s[0:1]", 16)
    a.s_load_dwordx2("s[8:9]", "s[0:1]", 0)
    a.s_load_dwordx2("s[10:11]", "s[0:1]", 64)
    decode_7x32(a)
    a.v_and_b32("v1", 63, "v0")
    a.v_and_b32("v2", 15, "v0")
    a.v_bfe_u32("v3", "v0", 4, 2)
    a.v_lshrrev_b32("v5", 6, "v0")
    a.v_readfirstlane_b32("s28", "v5")
    a.s_waitcnt(mods="lgkmcnt(0)")
    ws_srd(a, 12, 36)
    srd(a, 16, 38, WO_BYTES)
    srd(a, 20, 8, X_BYTES)
    srd(a, 24, 10, OUT_BYTES)
    a.s_add_u32("s50", "s36", WS_SEL)
    a.s_addc_u32("s51", "s37", 0)
    a.s_load_dwordx2("s[40:41]", "s[50:51]", 0)
    stamp(a, 0)
    a.v_lshrrev_b32("v7", 3, "v0")
    a.v_and_b32("v8", 7, "v0")
    a.v_mul_u32_u24("v9", 896, "v7")
    a.v_lshl_add_u32("v9", "v8", 4, "v9")
    a.s_lshl_b32("s33", "s2", 7)
    for i in range(14):
        a.s_add_u32("s34", "s33", 28672 * i)
        a.buffer_load_dwordx4(vr(72 + 4 * i, 4), "v9", "s[16:19]", "s34", mods="offen")
    stamp(a, 5)
    a.s_lshl_b32("s29", "s3", 6)
    a.s_lshl_b32("s30", "s28", 4)
    a.s_add_u32("s29", "s29", "s30")
    a.v_add_u32("v6", "s29", "v2")
    a.s_movk_i32("s31", 896)
    a.v_mul_lo_u32("v4", "v6", "s31")
    a.v_lshl_add_u32("v4", "v3", 3, "v4")
    a.s_mov_b32("s32", WS_O)
    for t in range(14):
        a.buffer_load_dwordx2(vr(16 + 4 * t, 2), "v4", "s[12:15]", "s32", mods="offen offset:%d" % (64 * t))
        a.buffer_load_dwordx2(vr(18 + 4 * t, 2), "v4", "s[12:15]", "s32", mods="offen offset:%d" % (64 * t + 32))
    stamp(a, 6)
    a.s_lshl_b32("s43", "s2", 7)
    a.v_add_u32("v10", "s43", "v4")
    for nb in range(4):
        a.buffer_load_dwordx2(vr(160 + 2 * nb, 2), "v10", "s[20:23]", 0, mods="offen offset:%d" % (32 * nb))
    a.v_lshlrev_b32("v11", 3, "v6")
    a.s_mov_b32("s45", WS_STATS)
    a.buffer_load_dwordx2("v[168:169]", "v11", "s[12:15]", "s45", mods="offen")
    if STAMPS:
        a.s_waitcnt(mods="vmcnt(33)")
    stamp(a, 7)
    a.v_mul_u32_u24("v11", SW3, "v7")
    a.v_lshl_add_u32("v11", "v8", 4, "v11")
    a.v_add_u32("v12", 7 * 32 * SW3, "v11")
    for i in range(14):
        a.ds_write_b128("v11" if i < 7 else "v12", vr(72 + 4 * i, 4), mods="offset:%d" % (32 * SW3 * (i % 7)))
    a.v_bfe_u32("v5", "v0", 2, 4)
    a.v_mul_u32_u24("v5", SW3, "v5")
    a.v_and_b32("v7", 3, "v0")
    a.v_lshl_add_u32("v5", "v7", 3, "v5")
    a.v_add_u32("v13", 7 * 32 * SW3, "v5")
    ACC = 136
    for i in range(16):
        a.v_mov_b32(vr(ACC + i), 0)
    a.s_waitcnt(mods="lgkmcnt(0)")
    stamp(a, 1)
    a.s_barrier()
    stamp(a, 2)
    BF = 72
    def breads(t):
        for nb in range(4):
            for h in range(2):
                a.ds_read_b64_tr_b16(vr(BF + 16 * (t % 4) + 4 * nb + 2 * h, 2), "v5" if t < 7 else "v13",
                                     mods="offset:%d" % ((32 * (t % 7) + 16 * h) * SW3 + 32 * nb))
    breads(0); breads(1); breads(2)
    for t in range(14):
        if t + 3 < 14:
            breads(t + 3)
        for nb in range(4):
            acc = vr(ACC + 4 * nb, 4)
            a.v_mfma_f32_16x16x32_bf16(acc, vr(BF + 16 * (t % 4) + 4 * nb, 4), vr(16 + 4 * t, 4), acc)
    stamp(a, 3)
    a.v_cmp_ne_u32("vcc", "s40", "v6")
    a.v_cmp_ne_u32("s[46:47]", "s41", "v6")
    a.s_and_b64("vcc", "vcc", "s[46:47]")
    a.s_and_saveexec_b64("s[48:49]", "vcc")
    for nb in range(4):
        acc = ACC + 4 * nb
        xr = 160 + 2 * nb
        a.v_lshlrev_b32("v172", 16, vr(xr))
        a.v_and_b32("v173", "0xffff0000", vr(xr))
        a.v_lshlrev_b32("v174", 16, vr(xr + 1))
        a.v_and_b32("v175", "0xffff0000", vr(xr + 1))
        for r in range(4):
            final_combine(a, 176 + r, 172 + r, acc + r, 168, 169, 180)
        a.v_cvt_pk_bf16_f32("v182", "v176", "v177")
        a.v_cvt_pk_bf16_f32("v183", "v178", "v179")
        a.buffer_store_dwordx2("v[182:183]", "v10", "s[24:27]", 0, mods="offen offset:%d" % (32 * nb))
    a.s_mov_b64("exec", "s[48:49]")
    stamp(a, 4)
    if STAMPS:
        a.raw("    s_mul_i32 s57, s3, 7")
        a.raw("    s_add_u32 s57, s57, s2")
    stamp_flush(a, 8, "s57", "s[12:15]", 0x7a0000, "k3")
    a.s_endpgm()
    a.label("k3_ffn")
    a.s_sub_u32("s3", "s2", 224)
    a.s_cmp_ge_u32("s3", 28)
    a.s_cbranch_scc1("k3_done")
    a.s_load_dwordx2("s[4:5]", "s[0:1]", 80)
    a.s_load_dwordx2("s[6:7]", "s[0:1]", 16)
    a.s_load_dwordx2("s[8:9]", "s[0:1]", 0)
    a.s_load_dwordx2("s[10:11]", "s[0:1]", 64)
    a.s_load_dwordx2("s[36:37]", "s[0:1]", 56)
    a.v_and_b32("v1", 1, "v0")
    a.v_lshrrev_b32("v2", 1, "v0")
    a.s_waitcnt(mods="lgkmcnt(0)")
    ws_srd(a, 12, 4)
    srd(a, 16, 6, WO_BYTES)
    srd(a, 20, 8, X_BYTES)
    srd(a, 24, 10, OUT_BYTES)
    srd(a, 28, 36, WG_BYTES)
    a.s_add_u32("s50", "s4", WS_SEL)
    a.s_addc_u32("s51", "s5", 0)
    a.s_load_dwordx4("s[40:43]", "s[50:51]", 0)
    stamp(a, 0)
    a.v_mul_u32_u24("v3", 896, "v2")
    a.v_lshl_add_u32("v3", "v1", 4, "v3")
    a.s_lshl_b32("s33", "s3", 5)
    for it in range(14):
        a.s_add_u32("s34", "s33", it * 128 * 896)
        a.buffer_load_dwordx4(vr(112 + 4 * it, 4), "v3", "s[28:31]", "s34", mods="offen")
    for it in range(4):
        a.s_add_u32("s34", "s33", it * 128 * 896)
        a.buffer_load_dwordx4(vr(168 + 4 * it, 4), "v3", "s[16:19]", "s34", mods="offen")
    AB = 73728
    a.v_lshlrev_b32("v4", 4, "v0")
    a.s_mov_b32("s35", WS_H)
    a.s_add_u32("s38", "s35", 3584)
    a.buffer_load_dwordx4("v[32:35]", "v4", "s[12:15]", "s35", mods="offen")
    a.buffer_load_dwordx4("v[36:39]", "v4", "s[12:15]", "s38", mods="offen")
    a.s_mul_i32("s44", "s40", 896)
    a.s_add_u32("s44", "s44", WS_O)
    a.s_mul_i32("s45", "s41", 896)
    a.s_add_u32("s45", "s45", WS_O)
    a.buffer_load_dwordx4("v[40:43]", "v4", "s[12:15]", "s44", mods="offen")
    a.buffer_load_dwordx4("v[44:47]", "v4", "s[12:15]", "s45", mods="offen")
    a.v_lshrrev_b32("v10", 4, "v0")
    a.v_and_b32("v11", 15, "v0")
    a.s_lshl_b32("s48", "s3", 4)
    a.v_add_u32("v11", "s48", "v11")
    a.v_cmp_eq_u32("vcc", 0, "v10")
    a.v_mov_b32("v12", "s41")
    a.v_mov_b32("v13", "s40")
    a.v_cndmask_b32("v12", "v12", "v13", "vcc")
    a.v_mov_b32("v13", "s43")
    a.v_mov_b32("v14", "s42")
    a.v_cndmask_b32("v13", "v13", "v14", "vcc")
    a.v_and_b32("v12", 2047, "v12")
    a.v_mul_u32_u24("v14", 896, "v12")
    a.v_lshl_add_u32("v14", "v11", 1, "v14")
    a.buffer_load_ushort("v15", "v14", "s[20:23]", 0, mods="offen")
    a.v_lshlrev_b32("v16", 3, "v12")
    a.s_mov_b32("s49", WS_STATS)
    a.buffer_load_dwordx2("v[18:19]", "v16", "s[12:15]", "s49", mods="offen")
    a.v_lshlrev_b32("v5", 5, "v2")
    a.v_lshl_add_u32("v5", "v1", 4, "v5")
    for it in range(14):
        a.ds_write_b128("v5", vr(112 + 4 * it, 4), mods="offset:%d" % (4096 * it))
    a.v_add_u32("v17", 14 * 4096, "v5")
    for it in range(4):
        a.ds_write_b128("v17", vr(168 + 4 * it, 4), mods="offset:%d" % (4096 * it))
    a.v_add_u32("v6", AB, "v4")
    a.v_cmp_gt_u32("vcc", 224, "v0")
    a.s_and_saveexec_b64("s[46:47]", "vcc")
    a.ds_write_b128("v6", "v[32:35]")
    a.ds_write_b128("v6", "v[36:39]", mods="offset:4608")
    a.s_mov_b64("exec", "s[46:47]")
    a.v_cmp_gt_u32("vcc", 64, "v0")
    a.s_and_saveexec_b64("s[46:47]", "vcc")
    a.ds_write_b128("v6", "v[40:43]", mods="offset:3584")
    a.ds_write_b128("v6", "v[44:47]", mods="offset:%d" % (4608 + 3584))
    a.s_mov_b64("exec", "s[46:47]")
    a.s_waitcnt(mods="lgkmcnt(0)")
    stamp(a, 1)
    a.s_barrier()
    a.v_lshrrev_b32("v7", 6, "v0")
    a.v_readfirstlane_b32("s28", "v7")
    a.v_and_b32("v20", 63, "v0")
    a.v_and_b32("v21", 15, "v0")
    a.v_bfe_u32("v22", "v0", 4, 2)
    a.v_bfe_u32("v23", "v0", 2, 4)
    a.v_lshlrev_b32("v23", 5, "v23")
    a.v_and_b32("v24", 3, "v0")
    a.v_lshl_add_u32("v23", "v24", 3, "v23")
    a.s_lshl_b32("s52", "s28", 10)
    a.v_add_u32("v23", "s52", "v23")
    a.v_mul_u32_u24("v25", 4608, "v21")
    a.v_lshl_add_u32("v25", "v22", 3, "v25")
    a.s_lshl_b32("s53", "s28", 6)
    a.s_add_u32("s53", "s53", AB)
    a.v_add_u32("v25", "s53", "v25")
    for i in range(18 * 4):
        a.v_mov_b32(vr(32 + i), 0)
    a.v_cmp_gt_u32("vcc", 2, "v21")
    a.s_and_saveexec_b64("s[46:47]", "vcc")
    for i in range(18):
        a.ds_read_b64(vr(32 + 4 * i, 2), "v25", mods="offset:%d" % (256 * i))
        a.ds_read_b64(vr(34 + 4 * i, 2), "v25", mods="offset:%d" % (256 * i + 32))
    a.s_mov_b64("exec", "s[46:47]")
    a.v_add_u32("v28", 14 * 4096, "v23")
    for i in range(18):
        a.ds_read_b64_tr_b16(vr(112 + 4 * i, 2), "v23" if i < 14 else "v28", mods="offset:%d" % (4096 * (i if i < 14 else i - 14)))
        a.ds_read_b64_tr_b16(vr(114 + 4 * i, 2), "v23" if i < 14 else "v28", mods="offset:%d" % (4096 * (i if i < 14 else i - 14) + 512))
    for q in range(8):
        a.v_mov_b32(vr(104 + q), 0)
    for i in range(14):
        acc = vr(104 + 0, 4)
        a.v_mfma_f32_16x16x32_bf16(acc, vr(112 + 4 * i, 4), vr(32 + 4 * i, 4), acc)
    for i in range(14, 18):
        acc = vr(108, 4)
        a.v_mfma_f32_16x16x32_bf16(acc, vr(112 + 4 * i, 4), vr(32 + 4 * i, 4), acc)
    stamp(a, 2)
    RED = 83968
    a.v_lshlrev_b32("v26", 6, "v21")
    a.v_lshl_add_u32("v26", "v22", 4, "v26")
    a.s_lshl_b32("s54", "s28", 8)
    a.s_add_u32("s54", "s54", RED)
    a.v_add_u32("v26", "s54", "v26")
    a.v_cmp_gt_u32("vcc", 2, "v21")
    a.s_and_saveexec_b64("s[46:47]", "vcc")
    a.ds_write_b128("v26", "v[104:107]")
    a.ds_write_b128("v26", "v[108:111]", mods="offset:128")
    a.s_mov_b64("exec", "s[46:47]")
    a.s_waitcnt(mods="lgkmcnt(0)")
    a.s_barrier()
    stamp(a, 3)
    if STAMPS:
        a.s_sub_u32("s57", "s2", 224)
        stamp_flush(a, 4, "s57", "s[12:15]", 0x7c0000, "f2")
    a.v_cmp_gt_u32("vcc", 32, "v0")
    a.s_and_saveexec_b64("s[46:47]", "vcc")
    a.s_cbranch_execz("k3_done")
    a.v_lshlrev_b32("v27", 2, "v0")
    a.v_add_u32("v27", RED, "v27")
    for w in range(4):
        a.ds_read_b32(vr(64 + w), "v27", mods="offset:%d" % (256 * w))
        a.ds_read_b32(vr(68 + w), "v27", mods="offset:%d" % (256 * w + 128))
    a.v_add_f32("v8", "v64", "v65")
    a.v_add_f32("v8", "v8", "v66")
    a.v_add_f32("v8", "v8", "v67")
    a.v_add_f32("v9", "v68", "v69")
    a.v_add_f32("v9", "v9", "v70")
    a.v_add_f32("v9", "v9", "v71")
    a.v_lshlrev_b32("v15", 16, "v15")
    rne(a, 8, 8)
    a.v_mul_f32("v8", "v8", "v13")
    rne(a, 8, 8)
    final_combine(a, 20, 15, 9, 18, 19, 21, 8)
    a.v_cvt_pk_bf16_f32("v20", "v20", "v20")
    a.buffer_store_short("v20", "v14", "s[24:27]", 0, mods="offen")
    a.label("k3_done")
    a.s_endpgm()
    return a, 86016, 184


KD = """.section .rodata,"a"
.p2align 6
.amdhsa_kernel {name}
  .amdhsa_next_free_vgpr {vgpr}
  .amdhsa_next_free_sgpr 96
  .amdhsa_accum_offset {acc}
  .amdhsa_group_segment_fixed_size 0
  .amdhsa_kernarg_size 88
  .amdhsa_user_sgpr_count 2
  .amdhsa_user_sgpr_kernarg_segment_ptr 1
  .amdhsa_system_sgpr_workgroup_id_x 1
.end_amdhsa_kernel
"""
HEADER = """; LN + sliding-window attention + MoD SwiGLU FFN, three launches (generated by dev/gen2.py)
"""


def build(kernels):
    out = [HEADER]
    for (name, a, lds, grid, block, vgpr) in kernels:
        out.append("; @launch kernel=%s grid=(%d,1,1) block=(%d,1,1) lds=%d\n" % (name, grid, block, lds))
    out.append('.amdgcn_target "amdgcn-amd-amdhsa--gfx950"\n')
    for (name, a, lds, grid, block, vgpr) in kernels:
        out.append(".text\n.globl %s\n.p2align 8\n.type %s,@function\n" % (name, name))
        out.append(a.finalize())
        out.append(KD.format(name=name, vgpr=vgpr, acc=(vgpr + 3) // 4 * 4))
    return "".join(out)


if __name__ == "__main__":
    if len(sys.argv) > 2 and sys.argv[2] == "stamps":
        STAMPS = True
    k1, l1, v1 = gen_k1()
    k2, l2, v2 = gen_k2()
    k3, l3, v3 = gen_k3()
    ks = [("k1_kernel", k1, l1, 224, 256, v1), ("k2_kernel", k2, l2, 256 + NF1, 512, v2), ("k3_kernel", k3, l3, 224 + 28, 256, v3)]
    open(sys.argv[1] if len(sys.argv) > 1 else "out.s", "w").write(build(ks))
```
